```python
import torch

def _softmax(x, axis=-1):
    return torch.softmax(x, dim=axis)
def _gelu(x):
    return torch.nn.functional.gelu(x, approximate="tanh")
def _silu(x):
    return torch.nn.functional.silu(x)
def _sigmoid(x):
    return torch.sigmoid(x)
def _layernorm(x, axis=-1, eps=1e-5):
    m = x.mean(dim=axis, keepdim=True)
    v = x.var(dim=axis, keepdim=True, unbiased=False)
    return (x - m) / torch.sqrt(v + eps)
def _scatter_add(tgt, idx, src, axis=0):
    return tgt.clone().index_add_(axis, idx, src)
def _segment_sum(src, seg, n):
    out = torch.zeros((n,) + src.shape[1:], dtype=src.dtype)
    return out.index_add_(0, seg, src)
def _pad(x, pw):
    flat = tuple(v for pair in reversed(pw) for v in pair)
    return torch.nn.functional.pad(x, flat)

kernel_name = 'gated_mix__linear_kernel_hedgehog__mixer_s_mlp__prompt'

def setup_inputs():

    _w = (lambda a: (lambda t: t.to(torch.bfloat16) if t.is_floating_point() else t)(torch.as_tensor(a)))
    def _A_setup():
        B, S, D, H = 1, 2048, 448, 16
        Dh = D // H
        return {
            "x": _w((lambda *s: torch.randn(*s, dtype=torch.bfloat16) * 0.05)(B, S, D)),
            "wqkv": _w((lambda *s: torch.randn(*s, dtype=torch.bfloat16) * 1.6)(D, 3 * D)),
            "w_phi": _w((lambda *s: torch.randn(*s, dtype=torch.bfloat16) * 1.6)(H, Dh, Dh) * (Dh ** -0.5)),
            "wo": _w((lambda *s: torch.randn(*s, dtype=torch.bfloat16) * 0.1)(D, D)),
        }
    _A_in = _A_setup()

    def _B_setup():
        B, S, D, F = 1, 2048, 448, 1792
        return {
            "x":  _w((lambda *s: torch.randn(*s, dtype=torch.bfloat16) * 0.05)(B, S, D)),
            "w1": _w((lambda *s: torch.randn(*s, dtype=torch.bfloat16) * 0.4)(D, D) * (D ** -0.5)),
            "w2": _w((lambda *s: torch.randn(*s, dtype=torch.bfloat16) * 0.4)(D, D) * (D ** -0.5)),
            "w3": _w((lambda *s: torch.randn(*s, dtype=torch.bfloat16) * 0.4)(D, F) * (D ** -0.5)),
            "w4": _w((lambda *s: torch.randn(*s, dtype=torch.bfloat16) * 0.4)(F, D) * (F ** -0.5)),
        }
    _B_in = _B_setup()

    return {
        "A_x": _A_in["x"],
        "A_wqkv": _A_in["wqkv"],
        "A_w_phi": _A_in["w_phi"],
        "A_wo": _A_in["wo"],
        "B_x": _B_in["x"],
        "B_w1": _B_in["w1"],
        "B_w2": _B_in["w2"],
        "B_w3": _B_in["w3"],
        "B_w4": _B_in["w4"],
        "gate_w": _w((lambda *s: torch.randn(*s, dtype=torch.bfloat16) * 0.05)(448) * 16.0),
    }

def reference(A_x, A_wqkv, A_w_phi, A_wo, B_x, B_w1, B_w2, B_w3, B_w4, gate_w):
    def _A_ref(x, wqkv, w_phi, wo):
        B, S, D = x.shape
        H = 16; Dh = D // H
        qkv = (lambda x, *d: x.permute(*d))((x @ wqkv).reshape(B, S, 3, H, Dh), 2, 0, 3, 1, 4)
        q, k, v = qkv[0], qkv[1], qkv[2]
        pq = torch.einsum("bhsd,hdf->bhsf", q, w_phi)
        pk = torch.einsum("bhsd,hdf->bhsf", k, w_phi)
        phi_q = torch.concatenate([_softmax(pq, axis=-1), _softmax(-pq, axis=-1)], axis=-1)
        phi_k = torch.concatenate([_softmax(pk, axis=-1), _softmax(-pk, axis=-1)], axis=-1)
        kv = torch.einsum("bhsf,bhsd->bhfd", phi_k, v)
        z  = torch.einsum("bhsf->bhf", phi_k)
        num = torch.einsum("bhqf,bhfd->bhqd", phi_q, kv)
        den = torch.einsum("bhqf,bhf->bhq", phi_q, z)[..., None] + 1e-6
        o = num / den
        return (lambda x, *d: x.permute(*d))(o, 0, 2, 1, 3).reshape(B, S, D) @ wo

    def _B_ref(x, w1, w2, w3, w4):
        B, S, D = x.shape
        h = _gelu(_layernorm(x, axis=-1) @ w1)
        c = D // 4
        g0 = _pad(h[:, :, 0*c:1*c], ((0, 0), (1, 0), (0, 0)))[:, :S, :]
        g1 = _pad(h[:, :, 1*c:2*c], ((0, 0), (0, 1), (0, 0)))[:, 1:, :]
        g2 = _pad(h[:, :, 2*c:3*c], ((0, 0), (2, 0), (0, 0)))[:, :S, :]
        g3 = _pad(h[:, :, 3*c:   ], ((0, 0), (0, 2), (0, 0)))[:, 2:, :]
        hs = torch.concatenate([g0, g1, g2, g3], axis=-1) @ w2
        x1 = x + hs
        h2 = _gelu(_layernorm(x1, axis=-1) @ w3) @ w4
        return x1 + h2

    x = A_x
    g = _sigmoid((x * gate_w).sum(-1, keepdims=True))
    a = _A_ref(x, A_wqkv, A_w_phi, A_wo)
    b = _B_ref(x, B_w1, B_w2, B_w3, B_w4)
    return g * a + (1 - g) * b
```

```python
import re

TRANS = ('v_exp_f32','v_log_f32','v_rcp_f32','v_rsq_f32','v_sqrt_f32','v_sin_f32','v_cos_f32','v_rcp_iflag_f32')

def parse_regs(tok):
    tok = tok.strip()
    tok = tok.lstrip('-')
    m = re.fullmatch(r'abs\((.*)\)', tok)
    if m: tok = m.group(1)
    m = re.fullmatch(r'\|(.*)\|', tok)
    if m: tok = m.group(1)
    m = re.fullmatch(r'([vas])(\d+)', tok)
    if m: return {(m.group(1), int(m.group(2)))}
    m = re.fullmatch(r'([vas])\[(\d+):(\d+)\]', tok)
    if m: return {(m.group(1), i) for i in range(int(m.group(2)), int(m.group(3))+1)}
    if tok in ('vcc','vcc_lo','vcc_hi'): return {('vcc',0)}
    if tok in ('exec','exec_lo','exec_hi'): return {('exec',0)}
    if tok == 'm0': return {('m0',0)}
    return set()

class Ins:
    __slots__=('kind','mn','defs','uses','slot','srcc','wide_store_data','passes','ab')

class Asm:
    def __init__(self):
        self.lines = []
        self.hist = []
        self.slot = 0
        self.vm_issued = 0
        self.lgkm_issued = 0
        self.nops = 0
        self.store_mod = ''
    def raw(self, s):
        self.lines.append(s)
    def comment(self, s):
        self.lines.append('    ; ' + s)
    def label(self, name):
        self.flush_hazards()
        self.lines.append(name + ':')
    def flush_hazards(self):
        need = 0
        for p in self.hist:
            d = self.slot - p.slot - 1
            if p.kind == 'mfma': need = max(need, (12 if p.passes==8 else 8) - d)
            elif p.kind in ('valu','trans'): need = max(need, 5 - d)
            elif p.kind == 'salu': need = max(need, 1 - d)
            elif p.kind == 'vmem': need = max(need, 2 - d)
        self._nop(need)
        self.hist = []
    def _nop(self, n):
        while n > 0:
            k = min(n, 16)
            self.lines.append('    s_nop %d' % (k-1))
            self.slot += k
            self.nops += k
            n -= k
    def __call__(self, text):
        text = text.strip()
        if text.startswith('buffer_store') and self.store_mod and not text.endswith('sc1'): text += ' ' + self.store_mod
        mn, _, rest = text.partition(' ')
        ops = []
        depth = 0; cur = ''
        for ch in rest:
            if ch in '[(': depth += 1
            if ch in '])': depth -= 1
            if ch == ',' and depth == 0:
                ops.append(cur.strip()); cur = ''
            else: cur += ch
        if cur.strip(): ops.append(cur.strip())
        mods = []
        if ops:
            parts = ops[-1].split()
            ops[-1] = parts[0]; mods = parts[1:]
        I = Ins(); I.mn = mn; I.defs=set(); I.uses=set(); I.srcc=set(); I.wide_store_data=set(); I.passes=0; I.ab=set()
        R = [parse_regs(o) for o in ops]
        if mn.startswith('v_mfma'):
            I.kind='mfma'; I.passes = 8 if '32x32' in mn else 4
            I.defs = R[0]; I.ab = R[1]|R[2]; I.srcc = R[3] if len(R)>3 else set(); I.uses = I.ab|I.srcc
        elif mn.startswith('v_'):
            I.kind = 'trans' if mn.replace('_e32','').replace('_e64','') in TRANS else 'valu'
            if mn.startswith('v_cmp'):
                I.defs = R[0]; I.uses = set().union(*R[1:])
                if mn.startswith('v_cmpx'): I.defs |= {('exec',0)}
            elif mn.startswith('v_permlane') or mn.startswith('v_swap'):
                I.defs = R[0]|R[1]; I.uses = R[0]|R[1]
            elif mn.startswith(('v_add_co','v_sub_co','v_addc_co','v_subb_co','v_subrev_co')):
                I.defs = R[0]|R[1]; I.uses = set().union(*R[2:])
            elif mn.startswith(('v_fmac','v_pk_fmac','v_dot2c')):
                I.defs = R[0]; I.uses = set().union(*R)
            else:
                I.defs = R[0]; I.uses = set().union(*R[1:]) if len(R)>1 else set()
                if mn.startswith('v_cndmask') and len(R) == 3: I.uses |= {('vcc',0)}
        elif mn.startswith(('buffer_','global_','flat_')):
            I.kind='vmem'
            if 'lds' in mods or '_lds_' in mn:
                I.uses = set().union(*R) | {('m0',0)}
            elif 'store' in mn or 'atomic' in mn:
                I.uses = set().union(*R)
                if 'x4' in mn or 'x3' in mn:
                    I.wide_store_data = R[0] if mn.startswith('buffer_') else R[1]
            else:
                I.defs = R[0]; I.uses = set().union(*R[1:])
        elif mn.startswith('ds_'):
            I.kind='ds'
            if mn.startswith(('ds_write','ds_add','ds_max','ds_min')):
                I.uses = set().union(*R)
            else:
                I.defs = R[0]; I.uses = set().union(*R[1:])
        elif mn.startswith('s_'):
            I.kind='salu'
            if mn.startswith(('s_cmp','s_waitcnt','s_barrier','s_nop','s_cbranch','s_branch','s_endpgm','s_setprio','s_sleep')):
                I.uses = set().union(*R) if R else set()
            else:
                I.defs = R[0]; I.uses = set().union(*R[1:]) if len(R)>1 else set()
                if 'saveexec' in mn: I.defs |= {('exec',0)}
        else:
            raise ValueError(text)
        dpp = any(m.startswith(('row_','quad_perm','wave_')) for m in mods)
        need = 0
        for p in self.hist:
            d = self.slot - p.slot - 1
            req = 0
            pv = {r for r in p.defs if r[0] in 'va'}
            ps = {r for r in p.defs if r[0] in ('s','vcc','exec')}
            if p.kind == 'mfma':
                big = 12 if p.passes==8 else 8
                if I.kind == 'mfma':
                    if pv & I.ab: req = max(req, big)
                    if pv & I.srcc:
                        if pv == I.srcc and p.passes == I.passes: pass
                        else: req = max(req, big-2)
                    if pv & I.defs and not (pv == I.srcc): req = max(req, big)
                else:
                    if pv & (I.uses | I.defs): req = max(req, big)
                    if I.kind in ('valu','trans') and (p.srcc & I.defs): req = max(req, 7 if p.passes==8 else 3)
            elif p.kind in ('valu','trans'):
                if I.kind == 'mfma' and (pv & I.uses): req = max(req, 2)
                if I.kind == 'mfma' and ('exec',0) in ps: req = max(req, 4)
                if p.kind == 'trans' and I.kind in ('valu','mfma') and (pv & I.uses): req = max(req, 1)
                if p.kind == 'trans' and I.kind in ('vmem','ds') and (pv & I.uses): req = max(req, 1)
                if I.kind in ('valu','trans'):
                    if ps & I.uses: req = max(req, 2)
                    if I.mn.startswith(('v_readlane','v_writelane')) and (ps & I.uses): req = max(req, 4)
                    if I.mn.startswith(('v_readfirstlane','v_readlane')) and (pv & I.uses): req = max(req, 1)
                    if I.mn.startswith('v_permlane') and (pv & I.uses): req = max(req, 2)
                    if dpp and (pv & I.uses): req = max(req, 2)
                    if dpp and ('exec',0) in ps: req = max(req, 5)
                    if ('exec',0) in ps and I.mn.startswith(('v_readlane','v_readfirstlane','v_writelane','v_permlane')): req = max(req,4)
                if I.kind == 'vmem' and (ps & I.uses): req = max(req, 5)
            elif p.kind == 'salu':
                if ('m0',0) in p.defs and ('m0',0) in I.uses and I.kind in ('vmem','ds'): req = max(req, 1)
            elif p.kind == 'vmem':
                if p.wide_store_data & I.defs: req = max(req, 2)
            need = max(need, req - d)
        self._nop(need)
        I.slot = self.slot
        if mn == 's_nop':
            self.slot += int(ops[0], 0) + 1
        else:
            self.slot += 1
        self.hist.append(I)
        self.hist = [p for p in self.hist if self.slot - p.slot < 24]
        self.lines.append('    ' + text)
        if mn.startswith(('s_cbranch','s_branch')):
            pass
        if I.kind == 'vmem':
            self.vm_issued += 1
            return self.vm_issued - 1
        if I.kind == 'ds':
            self.lgkm_issued += 1
            return self.lgkm_issued - 1
        return None
    def branch(self, text):
        self.flush_hazards()
        self(text)
    def wait_vm(self, seq):
        n = self.vm_issued - seq - 1
        n = max(0, min(n, 63))
        self('s_waitcnt vmcnt(%d)' % n)
    def wait_lgkm(self, seq):
        n = self.lgkm_issued - seq - 1
        n = max(0, min(n, 15))
        self('s_waitcnt lgkmcnt(%d)' % n)
    def text(self):
        return '\n'.join(self.lines) + '\n'

def vr(base, n=1, p='v'):
    return '%s%d' % (p, base) if n == 1 else '%s[%d:%d]' % (p, base, base+n-1)
def ar(base, n=1): return vr(base, n, 'a')
def sr(base, n=1): return vr(base, n, 's')
```

```python
import sys
sys.path.insert(0,'work')
from asmlib import *
import struct

H_OFF    = 0
X1_OFF   = 0x1C0000
PHIQ_OFF = 0x380000
KVP_OFF  = 0x780000
A4_OFF   = 0x980000
ST_OFF   = 0x1280000
G_OFF    = 0x12A0000
KVOP_OFF = 0x12A2000
CS3_OFF  = 0x12B2000
WS_SIZE  = 0x12C0000

LOG2E = 1.4426950408889634
def fbits(x): return '0x%08x' % struct.unpack('<I', struct.pack('<f', x))[0]
GC1 = -2.0*0.7978845608028654*LOG2E
GC2 = GC1*0.044715

KA = dict(x=16, wqkv=18, wphi=20, wo=22, bx=24, w1=26, w2=28, w3=30, w4=32, gate=34, out=36, dbg=38, ws=40)

def kernel_begin(a, name, nwg):
    a.raw('.globl %s' % name); a.raw('.p2align 8'); a.raw('.type %s,@function' % name); a.raw(name+':')
    a('s_cmp_ge_u32 s2, %d' % nwg)
    a.branch('s_cbranch_scc1 L_end_%s' % name)
    a('s_load_dwordx16 s[16:31], s[0:1], 0')
    a('s_load_dwordx8 s[32:39], s[0:1], 64')
    a('s_load_dwordx2 s[40:41], s[0:1], 96')

def kernel_end(a, name):
    a.label('L_end_%s' % name)
    a('s_endpgm')

def srd(a, d, ptr, size):
    p = KA[ptr]
    a('s_mov_b32 s%d, s%d' % (d, p)); a('s_and_b32 s%d, s%d, 0xffff' % (d+1, p+1))
    a('s_mov_b32 s%d, %s' % (d+2, size if isinstance(size,str) else '0x%x' % size)); a('s_mov_b32 s%d, 0x00020000' % (d+3))

def desc(name, vg, acc_off, sg=102):
    return '''.p2align 6
.amdhsa_kernel %s
  .amdhsa_next_free_vgpr %d
  .amdhsa_next_free_sgpr %d
  .amdhsa_accum_offset %d
  .amdhsa_group_segment_fixed_size 0
  .amdhsa_kernarg_size 104
  .amdhsa_user_sgpr_count 2
  .amdhsa_user_sgpr_kernarg_segment_ptr 1
  .amdhsa_system_sgpr_workgroup_id_x 1
.end_amdhsa_kernel
''' % (name, vg, sg, acc_off)

def interleave(a, streams):
    idx = [0]*len(streams)
    live = True
    while live:
        live = False
        for k, s in enumerate(streams):
            if idx[k] < len(s):
                a(s[idx[k]]); idx[k] += 1; live = True

def merge(a, main, fill, start=0, every=1):
    fi = 0
    for k, ins in enumerate(main):
        a(ins)
        if k >= start and (k-start) % every == 0 and fi < len(fill):
            a(fill[fi]); fi += 1
    while fi < len(fill):
        a(fill[fi]); fi += 1

def mfma(d, A, B, c):
    return 'v_mfma_f32_16x16x32_bf16 %s, %s, %s, %s' % (d, A, B, c)

def softmax_stream(P, T, OUTP, OUTM, vmask, sL, sNL):
    s = []
    p = lambda k: 'v%d' % (P+k)
    c, d = 'v%d' % T, 'v%d' % (T+1)
    e, f = 'v%d' % (T+2), 'v%d' % (T+3)
    EP = T+4; EM = T+12
    s.append('v_max3_f32 %s, %s, %s, %s' % (c, p(0), p(1), p(2)))
    s.append('v_max3_f32 %s, -%s, -%s, -%s' % (d, p(0), p(1), p(2)))
    s.append('v_max3_f32 %s, %s, %s, %s' % (c, c, p(3), p(4)))
    s.append('v_max3_f32 %s, %s, -%s, -%s' % (d, d, p(3), p(4)))
    s.append('v_max3_f32 %s, %s, %s, %s' % (c, c, p(5), p(6)))
    s.append('v_max3_f32 %s, %s, -%s, -%s' % (d, d, p(5), p(6)))
    s.append('v_max_f32 %s, %s, %s' % (c, c, p(7)))
    s.append('v_max_f32_e64 %s, %s, -%s' % (d, d, p(7)))
    s.append('v_permlane32_swap_b32 %s, %s' % (c, d))
    s.append('v_max_f32 %s, %s, %s' % (c, c, d))
    s.append('v_mov_b32 %s, %s' % (d, c))
    s.append('v_permlane16_swap_b32 %s, %s' % (c, d))
    s.append('v_max_f32 %s, %s, %s' % (c, c, d))
    s.append('v_mov_b32 %s, %s' % (d, c))
    s.append('v_permlane32_swap_b32 %s, %s' % (c, d))
    s.append('v_mul_f32 %s, s%d, %s' % (c, sNL, c))
    s.append('v_mul_f32 %s, s%d, %s' % (d, sNL, d))
    for k in range(8):
        s.append('v_fma_f32 v%d, %s, s%d, %s' % (EP+k, p(k), sL, c))
        s.append('v_fma_f32 v%d, %s, s%d, %s' % (EM+k, p(k), sNL, d))
    for k in range(8):
        s.append('v_exp_f32 v%d, v%d' % (EP+k, EP+k))
        s.append('v_exp_f32 v%d, v%d' % (EM+k, EM+k))
    for (E, acc, tmp) in ((EP, c, e), (EM, d, f)):
        s.append('v_add_f32 %s, v%d, v%d' % (acc, E, E+1))
        s.append('v_add_f32 %s, v%d, v%d' % (tmp, E+4, E+5))
    for (E, acc, tmp) in ((EP, c, e), (EM, d, f)):
        s.append('v_add_f32 %s, %s, v%d' % (acc, acc, E+2))
        s.append('v_add_f32 %s, %s, v%d' % (tmp, tmp, E+6))
    for (E, acc, tmp) in ((EP, c, e), (EM, d, f)):
        s.append('v_add_f32 %s, %s, v%d' % (acc, acc, E+3))
        s.append('v_add_f32 %s, %s, v%d' % (tmp, tmp, E+7))
    s.append('v_fmac_f32 %s, %s, %s' % (c, e, vmask))
    s.append('v_fmac_f32 %s, %s, %s' % (d, f, vmask))
    s.append('v_permlane32_swap_b32 %s, %s' % (c, d))
    s.append('v_add_f32 %s, %s, %s' % (c, c, d))
    s.append('v_mov_b32 %s, %s' % (d, c))
    s.append('v_permlane16_swap_b32 %s, %s' % (c, d))
    s.append('v_add_f32 %s, %s, %s' % (c, c, d))
    s.append('v_mov_b32 %s, %s' % (d, c))
    s.append('v_permlane32_swap_b32 %s, %s' % (c, d))
    s.append('v_rcp_f32 %s, %s' % (c, c))
    s.append('v_rcp_f32 %s, %s' % (d, d))
    s.append('v_mul_f32 %s, %s, %s' % (e, c, vmask))
    s.append('v_mul_f32 %s, %s, %s' % (f, d, vmask))
    for k in range(8):
        s.append('v_mul_f32 v%d, v%d, %s' % (EP+k, EP+k, c if k < 4 else e))
        s.append('v_mul_f32 v%d, v%d, %s' % (EM+k, EM+k, d if k < 4 else f))
    for k in range(4):
        s.append('v_cvt_pk_bf16_f32 v%d, v%d, v%d' % (OUTP+k, EP+2*k, EP+2*k+1))
        s.append('v_cvt_pk_bf16_f32 v%d, v%d, v%d' % (OUTM+k, EM+2*k, EM+2*k+1))
    return s

def gelu_stream(ACC, CS, T, OUT, vnmean, vrstd, vrs2, sC1, sC2):
    s = []
    Y = T; U = T+8
    for k in range(8):
        s.append('v_fma_f32 v%d, %s, %s, %s' % (U+k, vnmean, CS[k], ACC[k]))
    for k in range(8):
        s.append('v_mul_f32 v%d, v%d, %s' % (Y+k, U+k, vrstd))
    if vrs2 is not None:
        for k in range(8):
            s.append('v_mul_f32 %s, v%d, %s' % (ACC[k], U+k, vrs2))
    for k in range(8):
        s.append('v_mul_f32 v%d, v%d, v%d' % (U+k, Y+k, Y+k))
    for k in range(8):
        s.append('v_fma_f32 v%d, v%d, s%d, %s' % (U+k, U+k, sC2, 'v%d' % sC1 if False else 's%d' % sC1) if False else
                 'v_fma_f32 v%d, v%d, %s, %s' % (U+k, U+k, sC2, sC1))
    for k in range(8):
        s.append('v_mul_f32 v%d, v%d, v%d' % (U+k, U+k, Y+k))
    for k in range(8):
        s.append('v_exp_f32 v%d, v%d' % (U+k, U+k))
    for k in range(8):
        s.append('v_add_f32 v%d, 1.0, v%d' % (U+k, U+k))
    for k in range(8):
        s.append('v_rcp_f32 v%d, v%d' % (U+k, U+k))
    for k in range(8):
        s.append('v_mul_f32 v%d, %s, v%d' % (U+k, ACC[k] if vrs2 is not None else 'v%d' % (Y+k), U+k))
    for k in range(4):
        s.append('v_cvt_pk_bf16_f32 v%d, v%d, v%d' % (OUT+k, U+2*k, U+2*k+1))
    return s
```

```python
from gen_common import *

def gen_p1(a, name='p1_kernel', code_pf=True):
    kernel_begin(a, name, 256)
    SX, SW, SPH, SG, SWS, SC = 44, 48, 52, 56, 60, 64
    sW_, sT, sRT, sC_, sTYPE, sSUB, sPAR = 68, 69, 70, 71, 72, 73, 74
    sWOFF, sP8, sP40, sE, sXB, sXQ = 75, 76, 77, 78, 79, 80
    sL, sNL, sC2 = 84, 85, 86
    sT2, sT3 = 87, 88
    vL, vG, vI = 1, 2, 3
    vT = 4
    vDX = 16
    vDW = 18
    vXA = 20
    vWA = 22
    vONE = 36
    vMASK, vC1 = 34, 35
    XF = 40
    WF = 56
    ACC = 120
    RS = 184
    GR = 192
    CSA = 200
    vLIN = 216
    EP = 220
    SF = 0
    if code_pf:
        a('s_getpc_b64 s[%d:%d]' % (SC, SC+1))
        a.raw('L_pc_%s:' % name)
        a('s_sub_u32 s%d, s%d, L_pc_%s-L_code_start' % (SC, SC, name))
        a('s_subb_u32 s%d, s%d, 0' % (SC+1, SC+1))
        a('s_and_b32 s%d, s%d, 0xffff' % (SC+1, SC+1))
        a('s_mov_b32 s%d, L_code_end-L_code_start' % (SC+2))
        a('s_mov_b32 s%d, 0x00020000' % (SC+3))
        a('v_lshlrev_b32 v255, 7, v0')
        a('buffer_load_dword v254, v255, s[%d:%d], 0 offen' % (SC, SC+3))
        a('s_mov_b32 s%d, 32768' % sT)
        a('buffer_load_dword v253, v255, s[%d:%d], s%d offen' % (SC, SC+3, sT))
    a('v_lshrrev_b32 v%d, 6, v0' % vT)
    a('v_and_b32 v%d, 63, v0' % vL)
    a('v_readfirstlane_b32 s%d, v%d' % (sW_, vT))
    a('s_and_b32 s3, s2, 7'); a('s_lshr_b32 s4, s2, 3')
    a('s_lshr_b32 s5, s3, 1'); a('s_lshl_b32 s5, s5, 2'); a('s_and_b32 s6, s4, 3'); a('s_add_u32 s%d, s5, s6' % sRT)
    a('s_lshr_b32 s5, s4, 2')
    a('s_lshr_b32 s%d, s5, 2' % sTYPE)
    a('s_and_b32 s5, s5, 3'); a('s_and_b32 s6, s3, 1'); a('s_lshl_b32 s6, s6, 2'); a('s_add_u32 s%d, s5, s6' % sC_)
    a('s_lshr_b32 s%d, s%d, 1' % (sSUB, sW_)); a('s_and_b32 s%d, s%d, 1' % (sPAR, sW_))
    a('v_lshrrev_b32 v%d, 4, v%d' % (vG, vL)); a('v_and_b32 v%d, 15, v%d' % (vI, vL))
    a('v_lshlrev_b32 v%d, 4, v%d' % (vLIN, vL))
    a('v_lshrrev_b32 v%d, 3, v%d' % (vT, vL))
    a('v_and_b32 v%d, 7, v%d' % (vT+1, vL))
    a('v_lshrrev_b32 v%d, 1, v%d' % (vT+2, vT))
    a('v_xor_b32 v%d, v%d, v%d' % (vT+3, vT+1, vT+2))
    a('v_mul_u32_u24 v%d, 896, v%d' % (vT+4, vT))
    a('v_lshl_add_u32 v%d, v%d, 4, v%d' % (vDX, vT+3, vT+4))
    a('v_xor_b32 v%d, 4, v%d' % (vT+3, vT+3))
    a('v_lshl_add_u32 v%d, v%d, 4, v%d' % (vDX+1, vT+3, vT+4))
    a('s_waitcnt lgkmcnt(0)')
    srd(a, SX, 'x', 2048*896)
    a('s_xor_b32 s5, s%d, 1' % sTYPE); a('s_and_b32 s5, s5, s%d' % sSUB)
    a('s_mov_b32 s%d, %d' % (SW+2, 448*2688)); a('s_mov_b32 s6, 2688'); a('s_mov_b32 s7, 112')
    a('s_cmp_eq_u32 s5, 1')
    a('s_cselect_b32 s%d, s%d, s%d' % (SW, KA['w1'], KA['wqkv']))
    a('s_cselect_b32 s%d, s%d, s%d' % (SW+1, KA['w1']+1, KA['wqkv']+1))
    a('s_cselect_b32 s%d, %d, s%d' % (SW+2, 448*896, SW+2))
    a('s_cselect_b32 s6, 896, s6')
    a('s_cselect_b32 s7, 128, s7')
    a('s_and_b32 s%d, s%d, 0xffff' % (SW+1, SW+1))
    a('s_mov_b32 s%d, 0x00020000' % (SW+3))
    a('s_mul_i32 s%d, s7, s%d' % (sWOFF, sC_))
    a('s_add_u32 s8, s%d, 1' % sSUB); a('s_mul_i32 s8, s8, s%d' % sTYPE); a('s_mul_i32 s8, s8, 896')
    a('s_add_u32 s%d, s%d, s8' % (sWOFF, sWOFF))
    a('s_lshl_b32 s%d, s6, 3' % sP8); a('s_mul_i32 s%d, s%d, 5' % (sP40, sP8))
    a('s_lshl_b32 s8, s6, 5'); a('s_mul_i32 s8, s8, s%d' % sPAR); a('s_add_u32 s%d, s%d, s8' % (sWOFF, sWOFF))
    a('s_cmp_eq_u32 s%d, 7' % sC_); a('s_cselect_b32 s8, s5, 0'); a('s_cmp_eq_u32 s8, 1')
    a('s_cselect_b32 s%d, 0, s%d' % (SW+2, SW+2))
    a('s_lshl_b32 s8, s%d, 7' % sRT); a('s_lshl_b32 s9, s%d, 5' % sW_); a('s_add_u32 s8, s8, s9'); a('s_mul_i32 s%d, s8, 896' % sXQ)
    for q in range(1, 4): a('s_add_u32 s%d, s%d, %d' % (sXQ+q, sXQ, q*7168))
    a('s_mul_i32 s%d, s%d, 28672' % (sXB, sW_))
    a('s_mul_i32 s8, s%d, 24576' % sSUB); a('s_lshl_b32 s9, s%d, 12' % sPAR); a('s_add_u32 s8, s8, s9'); a('s_add_u32 s%d, s8, 114688' % sE)
    a('v_and_b32 v%d, 1, v%d' % (vT+2, vT+2))
    a('v_lshlrev_b32 v%d, 2, v%d' % (vT+2, vT+2))
    a('v_xor_b32 v%d, v%d, v%d' % (vT+3, vT+1, vT+2))
    a('v_mul_u32_u24 v%d, s6, v%d' % (vT+4, vT))
    a('s_cmp_eq_u32 s5, 1'); a('s_cselect_b64 s[10:11], -1, 0')
    for eo in range(2):
        if eo: a('v_xor_b32 v%d, 1, v%d' % (vT+3, vT+3))
        a('v_lshrrev_b32 v%d, 2, v%d' % (vT+5, vT+3))
        a('v_and_b32 v%d, 3, v%d' % (vT+6, vT+3))
        a('v_mul_u32_u24 v%d, 56, v%d' % (vT+5, vT+5))
        a('v_lshl_add_u32 v%d, v%d, 4, v%d' % (vT+5, vT+6, vT+5))
        a('v_cmp_eq_u32 vcc, 3, v%d' % (vT+6))
        a('v_subrev_u32 v%d, 8, v%d' % (vT+7, vT+5))
        a('v_cndmask_b32 v%d, v%d, v%d, vcc' % (vT+5, vT+5, vT+7))
        a('v_lshlrev_b32 v%d, 4, v%d' % (vT+7, vT+3))
        a('v_cndmask_b32 v%d, v%d, v%d, s[10:11]' % (vT+5, vT+5, vT+7))
        a('v_add_u32 v%d, v%d, v%d' % (vDW+eo, vT+5, vT+4))
    seqW = {}; seqX = {}
    def issue_W(j):
        for q in range(4):
            if j < 3: a('s_add_u32 m0, s%d, %d' % (sE, j*8192 + q*1024))
            else:     a('s_add_u32 m0, s%d, %d' % (sXB, (j-3)*4096 + q*1024))
            seqW[j] = a('buffer_load_dwordx4 v%d, s[%d:%d], s%d offen lds' % (vDW+(q&1), SW, SW+3, sWOFF))
            a('s_add_u32 s%d, s%d, s%d' % (sWOFF, sWOFF, sP8 if q < 3 else sP40))
    def issue_X(kk):
        for q in range(4):
            a('s_add_u32 m0, s%d, %d' % (sXB, kk*4096 + q*1024))
            a('s_add_u32 s%d, s%d, %d' % (sT, sXQ+q, kk*128))
            seqX[kk] = a('buffer_load_dwordx4 v%d, s[%d:%d], s%d offen lds' % (vDX+(q&1), SX, SX+3, sT))
    for j in range(3):
        issue_W(j); issue_X(j)
    for j in range(3, 7): issue_X(j)
    srd(a, SPH, 'wphi', 16*1568); srd(a, SG, 'gate', 896); srd(a, SWS, 'ws', WS_SIZE)
    a('s_mov_b32 s%d, %s' % (sL, fbits(LOG2E))); a('s_mov_b32 s%d, %s' % (sNL, fbits(-LOG2E))); a('s_mov_b32 s%d, %s' % (sC2, fbits(GC2)))
    a('v_mov_b32 v%d, %s' % (vC1, fbits(GC1)))
    for k in range(4): a('v_mov_b32 v%d, 0x3f803f80' % (vONE+k))
    a('v_cmp_eq_u32 vcc, 3, v%d' % vG)
    a('v_cndmask_b32 v%d, 1.0, 0, vcc' % vMASK)
    for k in range(16): a('v_mov_b32 v%d, 0' % (CSA+k))
    a('s_cmp_eq_u32 s%d, 7' % sC_); a('s_cselect_b32 s8, 1, 0'); a('s_xor_b32 s9, s%d, 1' % sTYPE); a('s_and_b32 s%d, s8, s9' % sT2)
    a('s_cmp_eq_u32 s%d, 1' % sT2)
    a.branch('s_cbranch_scc1 L_p1_gate')
    for k in range(56): a('v_accvgpr_write_b32 a%d, v%d' % (SF+k, vONE))
    a.branch('s_branch L_p1_gate_done')
    a.label('L_p1_gate')
    a('v_lshlrev_b32 v%d, 4, v%d' % (vT, vG))
    for ks in range(14):
        a('buffer_load_dwordx4 a[%d:%d], v%d, s[%d:%d], 0 offen offset:%d' % (SF+4*ks, SF+4*ks+3, vT, SG, SG+3, ks*64))
    a('s_waitcnt vmcnt(0)')
    a.vm_issued -= 14
    a.label('L_p1_gate_done')
    a('v_lshrrev_b32 v%d, 1, v%d' % (vT, vI))
    a('v_xor_b32 v%d, v%d, v%d' % (vT, vT, vG))
    a('v_lshlrev_b32 v%d, 4, v%d' % (vT, vT))
    a('v_lshl_add_u32 v%d, v%d, 7, v%d' % (vT, vI, vT))
    a('v_add_u32 v%d, s%d, v%d' % (vXA, sXB, vT))
    a('v_xor_b32 v%d, 64, v%d' % (vXA+1, vXA))
    a('v_bfe_u32 v%d, v%d, 2, 2' % (vT, vL))
    a('v_and_b32 v%d, 3, v%d' % (vT+1, vL))
    a('v_lshl_add_u32 v%d, v%d, 3, v%d' % (vT+2, vG, vT))
    a('v_lshlrev_b32 v%d, 7, v%d' % (vT+2, vT+2))
    a('v_lshrrev_b32 v%d, 1, v%d' % (vT+3, vT))
    a('v_lshlrev_b32 v%d, 2, v%d' % (vT+3, vT+3))
    a('v_and_b32 v%d, 1, v%d' % (vT+4, vG))
    a('v_or_b32 v%d, v%d, v%d' % (vT+3, vT+3, vT+4))
    a('v_xor_b32 v%d, v%d, v%d' % (vT+3, vT+3, vT+1))
    a('v_lshl_add_u32 v%d, v%d, 4, v%d' % (vT+2, vT+3, vT+2))
    a('v_and_b32 v%d, 1, v%d' % (vT+3, vT+1))
    a('v_lshl_add_u32 v%d, v%d, 3, v%d' % (vWA+0, vT+3, vT+2))
    a('v_xor_b32 v%d, 8, v%d' % (vWA+1, vWA+0))
    a('v_xor_b32 v%d, 64, v%d' % (vWA+2, vWA+0))
    a('v_xor_b32 v%d, 64, v%d' % (vWA+3, vWA+1))
    for k in range(4):
        a('v_add_u32 v%d, 57344, v%d' % (vWA+4+k, vWA+k))
        a('v_add_u32 v%d, 114688, v%d' % (vWA+8+k, vWA+k))
    vPH = 217
    a('v_lshrrev_b32 v%d, 3, v%d' % (vT, vL))
    a('v_and_b32 v%d, 7, v%d' % (vT+1, vL))
    a('v_bfe_u32 v%d, v%d, 1, 1' % (vT+2, vT))
    a('v_lshlrev_b32 v%d, 2, v%d' % (vT+2, vT+2))
    a('v_or_b32 v%d, s%d, v%d' % (vT+2, sPAR, vT+2))
    a('v_xor_b32 v%d, v%d, v%d' % (vT+3, vT+1, vT+2))
    a('v_lshrrev_b32 v%d, 2, v%d' % (vT+5, vT+3))
    a('v_and_b32 v%d, 3, v%d' % (vT+6, vT+3))
    a('v_mul_u32_u24 v%d, 1568, v%d' % (vT+5, vT+5))
    a('v_lshl_add_u32 v%d, v%d, 4, v%d' % (vT+5, vT+6, vT+5))
    a('v_cmp_eq_u32 vcc, 3, v%d' % (vT+6))
    a('v_subrev_u32 v%d, 8, v%d' % (vT+7, vT+5))
    a('v_cndmask_b32 v%d, v%d, v%d, vcc' % (vT+5, vT+5, vT+7))
    a('s_lshl_b32 s8, s%d, 3' % sW_)
    a('v_add_u32 v%d, s8, v%d' % (vT+6, vT))
    a('v_subrev_u32 v%d, 4, v%d' % (vT+7, vT+6))
    a('v_cmp_le_u32 vcc, 28, v%d' % (vT+6))
    a('v_cndmask_b32 v%d, v%d, v%d, vcc' % (vT+7, vT+6, vT+7))
    a('v_mad_u32_u24 v%d, v%d, 56, v%d' % (vT+5, vT+7, vT+5))
    a('s_mul_i32 s8, s%d, 3136' % sC_)
    a('v_add_u32 v%d, s8, v%d' % (vT+5, vT+5))
    a('v_subrev_u32 v%d, 24, v%d' % (vT+6, vT+6))
    a('v_cmp_gt_u32 vcc, 4, v%d' % (vT+6))
    a('v_mov_b32 v%d, 0x7fffffff' % (vT+7))
    a('v_cndmask_b32 v%d, v%d, v%d, vcc' % (vPH, vT+5, vT+7))

    def wbase(sub, ks):
        if ks < 6: return 2, sub*24576 + ks*4096
        j = ks >> 1; t = ks & 1; wv = 2*sub + t
        return (wv >> 1), (wv & 1)*28672 + (j-3)*4096
    def reads(ks):
        b = ks & 1; out = []
        for mt in range(2):
            out.append('ds_read_b128 %s, v%d offset:%d' % (vr(XF+b*8+mt*4, 4), vXA+(ks&1), (ks>>1)*4096 + mt*2048))
        for tile in range(8):
            sub = tile >> 2; k4 = tile & 3
            bs, off = wbase(sub, ks)
            for e in range(2):
                out.append('ds_read_b64_tr_b16 %s, v%d offset:%d' % (vr(WF+b*32+tile*4+e*2, 2), vWA+bs*4+k4, off + e*512))
        return out
    def mfmas(ks):
        b = ks & 1; out = []
        for tile in range(8):
            for mt in range(2):
                d = vr(ACC+(mt*8+tile)*4, 4)
                out.append(mfma(d, vr(WF+b*32+tile*4, 4), vr(XF+b*8+mt*4, 4), d if ks else '0'))
        for mt in range(2):
            d = vr(RS+mt*4, 4); out.append(mfma(d, ar(SF+4*ks, 4), vr(XF+b*8+mt*4, 4), d if ks else '0'))
            d = vr(GR+mt*4, 4); out.append(mfma(d, vr(XF+b*8+mt*4, 4), vr(XF+b*8+mt*4, 4), d if ks else '0'))
        return out
    def colsum(ks):
        b = ks & 1
        a('s_cmp_lg_u32 s%d, %d' % (sW_, ks & 3))
        a.branch('s_cbranch_scc1 L_p1_cs%d' % ks)
        for t in range(4):
            d = vr(CSA+t*4, 4)
            a(mfma(d, vr(WF+b*32+(4+t)*4, 4), vr(vONE, 4), d))
        a.label('L_p1_cs%d' % ks)
    a.wait_vm(max(seqW[0], seqX[0])); a('s_barrier')
    for r in reads(0): a(r)
    seqPH = None
    for ks in range(14):
        a('s_waitcnt lgkmcnt(0)')
        j = ks >> 1
        if ks & 1:
            if j <= 3: issue_W(j+3)
            if j == 4:
                a('s_add_u32 m0, s%d, %d' % (sXB, 4*4096))
                seqPH = a('buffer_load_dwordx4 v%d, s[%d:%d], 0 offen lds' % (vPH, SPH, SPH+3))
        M = mfmas(ks)
        if ks == 13:
            for m in M: a(m)
        elif ks & 1:
            for m in M[:6]: a(m)
            jn = j+1
            w = max(seqW[jn], seqX[jn])
            if jn == 6: w = max(w, seqPH)
            a.wait_vm(w); a('s_barrier')
            merge(a, M[6:], reads(ks+1), 0, 1)
        else:
            merge(a, M, reads(ks+1), 0, 1)
        colsum(ks)
    return dict(locals())
```

```python
from gen_common import *
from gen_p1 import gen_p1

def gen_p1_full(a, name='p1_kernel', code_pf=True):
    L = gen_p1(a, name, code_pf)
    globals().update({k: v for k, v in L.items() if isinstance(v, int)})
    EB = 114688
    vPB = 4
    PHF = 220
    a('v_mul_u32_u24 v%d, 27648, v%d' % (vPB, vG))
    a('v_and_b32 v%d, 1, v%d' % (vPB+2, vG))
    a('v_lshl_add_u32 v%d, v%d, 9, v%d' % (vPB, vPB+2, vPB))
    a('v_add_u32 v%d, 16384, v%d' % (vPB, vPB))
    a('v_xor_b32 v%d, 512, v%d' % (vPB+1, vPB))
    for k4 in range(4):
        for e in range(2):
            a('v_add_u32 v%d, v%d, v%d' % (8+k4*2+e, vWA+k4, vPB+e))
    for k4 in range(4):
        for e in range(2):
            a('ds_read_b64_tr_b16 %s, v%d' % (vr(PHF+k4*4+e*2, 2), 8+k4*2+e))
    a('v_cmp_eq_u32 s[90:91], 3, v%d' % vG)
    a('s_lshl_b32 s%d, s%d, 3' % (sT, sRT)); a('s_lshl_b32 s8, s%d, 1' % sW_); a('s_add_u32 s%d, s%d, s8' % (sT, sT))
    a('s_cmp_eq_u32 s%d, 1' % sTYPE)
    a.branch('s_cbranch_scc1 L_p1_B')
    a('s_lshl_b32 s8, s%d, 12' % sW_); a('s_add_u32 s8, s8, %d' % EB)
    a('v_add_u32 v16, s8, v%d' % vLIN)
    for t in range(4):
        a('ds_write_b128 v16, %s offset:%d' % (vr(CSA+t*4, 4), t*1024))
    def sm_pair(head, is_k):
        inst = []
        for mt in range(2):
            B = 40 + mt*40
            QF, P, T, OP, OM = B, B+4, B+12, B+32, B+36
            A0 = ACC + (mt*8 + 2*head)*4
            for k in range(4):
                a('v_cvt_pk_bf16_f32 v%d, v%d, v%d' % (QF+k, A0+2*k, A0+2*k+1))
            inst.append((QF, P, T, OP, OM))
        for mt in range(2):
            QF, P, T, OP, OM = inst[mt]
            for Tf in range(2):
                a(mfma(vr(P+Tf*4, 4), vr(PHF+(head*2+Tf)*4, 4), vr(QF, 4), '0'))
        interleave(a, [softmax_stream(P, T, OP, OM, 'v%d' % vMASK, sL, sNL) for (QF, P, T, OP, OM) in inst])
        return inst
    a('s_waitcnt lgkmcnt(0)')
    a('s_lshl_b32 s8, s%d, 15' % sT); a('s_lshl_b32 s9, s%d, 12' % sC_); a('s_add_u32 s8, s8, s9'); a('s_add_u32 s%d, s8, 0x%x' % (sT3, PHIQ_OFF))
    for head in range(2):
        inst = sm_pair(head, False)
        for mt in range(2):
            QF, P, T, OP, OM = inst[mt]
            a('s_add_u32 s8, s%d, %d' % (sT3, mt*32768 + head*2048))
            a('buffer_store_dwordx4 %s, v%d, s[%d:%d], s8 offen' % (vr(OP, 4), vLIN, SWS, SWS+3))
            a('buffer_store_dwordx4 %s, v%d, s[%d:%d], s8 offen offset:1024' % (vr(OM, 4), vLIN, SWS, SWS+3))
    a('s_cmp_eq_u32 s%d, 1' % sT2)
    a.branch('s_cbranch_scc1 L_p1_gate_out')
    a('s_barrier')
    a('v_add_u32 v16, %d, v%d' % (EB, vLIN))
    CR = 40
    for wv in range(4):
        for t in range(4):
            a('ds_read_b128 %s, v16 offset:%d' % (vr(CR+(wv*4+t)*4, 4), wv*4096 + t*1024))
    a('v_and_b32 v4, 3, v%d' % vI)
    a('v_cmp_eq_u32 s[92:93], 1, v4'); a('v_cmp_eq_u32 s[94:95], 2, v4'); a('v_cmp_eq_u32 s[96:97], 3, v4')
    a('v_lshrrev_b32 v5, 2, v%d' % vI); a('v_lshl_add_u32 v5, v5, 4, v%d' % vI); a('v_lshlrev_b32 v5, 2, v5')
    for mt in range(2):
        a('v_cndmask_b32 v%d, v%d, v%d, s[92:93]' % (6+mt, GR+mt*4, GR+mt*4+1))
        a('v_cndmask_b32 v%d, v%d, v%d, s[94:95]' % (6+mt, 6+mt, GR+mt*4+2))
        a('v_cndmask_b32 v%d, v%d, v%d, s[96:97]' % (6+mt, 6+mt, GR+mt*4+3))
    for mt in range(2):
        a('ds_bpermute_b32 v%d, v5, v%d' % (8+mt, 6+mt))
    a('s_waitcnt lgkmcnt(0)')
    vNM, vRS = 10, 12
    for mt in range(2):
        a('v_mul_f32 v%d, %s, v%d' % (vNM+mt, fbits(-1.0/448), RS+mt*4))
        a('v_mul_f32 v%d, %s, v%d' % (8+mt, fbits(1.0/448), 8+mt))
        a('v_fma_f32 v%d, -v%d, v%d, v%d' % (8+mt, vNM+mt, vNM+mt, 8+mt))
        a('v_add_f32 v%d, %s, v%d' % (8+mt, fbits(1e-5), 8+mt))
        a('v_rsq_f32 v%d, v%d' % (vRS+mt, 8+mt))
    for k in range(16):
        a('v_add_f32 v%d, v%d, v%d' % (CR+k, CR+k, CR+16+k))
        a('v_add_f32 v%d, v%d, v%d' % (CR+32+k, CR+32+k, CR+48+k))
    for k in range(16):
        a('v_add_f32 v%d, v%d, v%d' % (CR+k, CR+k, CR+32+k))
    a('s_mul_i32 s8, s%d, 14336' % sT); a('s_lshl_b32 s9, s%d, 11' % sC_); a('s_add_u32 s%d, s8, s9' % sT3)
    for cg in range(2):
        streams = []
        for mt in range(2):
            A0 = ACC + (mt*8 + 4 + 2*cg)*4
            T = 60 + mt*24
            streams.append(gelu_stream(['v%d' % (A0+k) for k in range(8)], ['v%d' % (CR+cg*8+k) for k in range(8)], T, T+16,
                                       'v%d' % (vNM+mt), 'v%d' % (vRS+mt), None, 'v%d' % vC1, 's%d' % sC2))
        interleave(a, streams)
        for mt in range(2):
            a('s_add_u32 s8, s%d, %d' % (sT3, H_OFF + mt*14336 + cg*1024))
            a('buffer_store_dwordx4 %s, v%d, s[%d:%d], s8 offen' % (vr(60+mt*24+16, 4), vLIN, SWS, SWS+3))
    a.branch('s_branch L_end_%s' % name)
    a.label('L_p1_gate_out')
    for mt in range(2):
        a('v_mul_f32 v%d, s%d, v%d' % (4+mt, sNL, RS+mt*4))
        a('v_exp_f32 v%d, v%d' % (4+mt, 4+mt))
        a('v_add_f32 v%d, 1.0, v%d' % (4+mt, 4+mt))
        a('v_rcp_f32 v%d, v%d' % (4+mt, 4+mt))
    a('v_lshlrev_b32 v6, 2, v%d' % vI)
    a('s_lshl_b32 s8, s%d, 6' % sT); a('s_add_u32 s8, s8, 0x%x' % G_OFF)
    for mt in range(2):
        a('buffer_store_dword v%d, v6, s[%d:%d], s8 offen offset:%d' % (4+mt, SWS, SWS+3, mt*64))
    a.branch('s_branch L_end_%s' % name)
    a.label('L_p1_B')
    vIW = 16
    a('v_bfe_u32 v4, v%d, 1, 2' % vI); a('v_xor_b32 v4, v4, v%d' % vG); a('v_lshlrev_b32 v4, 4, v4')
    a('v_lshl_add_u32 v4, v%d, 6, v4' % vI)
    a('s_lshl_b32 s8, s%d, 11' % sW_); a('s_add_u32 s8, s8, %d' % EB)
    a('v_add_u32 v%d, s8, v4' % vIW)
    for head in range(2):
        for mt in range(2):
            A0 = ACC + (mt*8 + 4 + 2*head)*4
            a('v_cndmask_b32 v%d, v%d, 1.0, s[90:91]' % (A0+4, A0+4))
            VF = 240 + (head*2+mt)*4
            for k in range(4):
                a('v_cvt_pk_bf16_f32 v%d, v%d, v%d' % (VF+k, A0+2*k, A0+2*k+1))
            a('ds_write_b128 v%d, %s offset:%d' % (vIW, vr(VF, 4), 32768 + head*8192 + mt*1024))
    a('s_waitcnt lgkmcnt(0)')
    for head in range(2):
        inst = sm_pair(head, True)
        for mt in range(2):
            QF, P, T, OP, OM = inst[mt]
            a('ds_write_b128 v%d, %s offset:%d' % (vIW, vr(OP, 4), (head*2)*8192 + mt*1024))
            a('ds_write_b128 v%d, %s offset:%d' % (vIW, vr(OM, 4), (head*2+1)*8192 + mt*1024))
    a('v_bfe_u32 v4, v%d, 2, 2' % vL)
    a('v_and_b32 v5, 3, v%d' % vL)
    a('v_lshl_add_u32 v6, v%d, 3, v4' % vG)
    a('v_lshlrev_b32 v6, 6, v6')
    a('v_lshrrev_b32 v7, 1, v4'); a('v_xor_b32 v7, v7, v5')
    a('v_lshl_add_u32 v6, v7, 4, v6')
    a('v_xor_b32 v7, 32, v6'); a('v_add_u32 v7, 256, v7')
    a('s_lshl_b32 s8, s%d, 13' % sW_); a('s_add_u32 s8, s8, %d' % EB)
    a('s_lshl_b32 s9, s%d, 13' % sSUB); a('s_add_u32 s9, s9, %d' % (EB+32768))
    a('v_add_u32 v8, s8, v6'); a('v_add_u32 v9, s8, v7'); a('v_add_u32 v10, s9, v6'); a('v_add_u32 v11, s9, v7')
    a('s_waitcnt lgkmcnt(0)')
    a('s_barrier')
    KF = 40
    for kk in range(4):
        for T in range(2):
            for e in range(2):
                a('ds_read_b64_tr_b16 %s, v%d offset:%d' % (vr(KF+kk*16+T*4+e*2, 2), 8+e, kk*2048 + 8*T))
        for T in range(2):
            for e in range(2):
                a('ds_read_b64_tr_b16 %s, v%d offset:%d' % (vr(KF+kk*16+8+T*4+e*2, 2), 10+e, kk*2048 + 8*T))
    KV = 120
    for kk in range(4):
        a('s_waitcnt lgkmcnt(%d)' % min(15, (3-kk)*8))
        for Td in range(2):
            for Tf in range(2):
                d = vr(KV+(Td*2+Tf)*4, 4)
                a(mfma(d, vr(KF+kk*16+Tf*4, 4), vr(KF+kk*16+8+Td*4, 4), d if kk else '0'))
    a('s_lshl_b32 s8, s%d, 5' % sRT); a('s_lshl_b32 s9, s%d, 2' % sC_); a('s_add_u32 s8, s8, s9'); a('s_add_u32 s8, s8, s%d' % sW_)
    a('s_lshl_b32 s8, s8, 12'); a('s_add_u32 s8, s8, 0x%x' % KVP_OFF)
    for q in range(4):
        a('buffer_store_dwordx4 %s, v%d, s[%d:%d], s8 offen offset:%d' % (vr(KV+q*4, 4), vLIN, SWS, SWS+3, q*1024))
    kernel_end(a, name)
```

```python
from gen_common import *

vL, vG, vI, vLIN = 1, 2, 3, 216
def ids(a, sW_):
    a('v_lshrrev_b32 v4, 6, v0')
    a('v_and_b32 v%d, 63, v0' % vL)
    a('v_readfirstlane_b32 s%d, v4' % sW_)
    a('v_lshrrev_b32 v%d, 4, v%d' % (vG, vL)); a('v_and_b32 v%d, 15, v%d' % (vI, vL))
    a('v_lshlrev_b32 v%d, 4, v%d' % (vLIN, vL))
    a('s_and_b32 s3, s2, 7'); a('s_lshr_b32 s4, s2, 3')

def dma_offs(a, vD, pitch):
    a('v_lshrrev_b32 v4, 3, v%d' % vL); a('v_and_b32 v5, 7, v%d' % vL)
    a('v_bfe_u32 v6, v4, 1, 1'); a('v_lshlrev_b32 v6, 2, v6'); a('v_xor_b32 v5, v5, v6')
    a('v_mul_u32_u24 v4, %d, v4' % pitch)
    a('v_lshl_add_u32 v%d, v5, 4, v4' % vD)
    a('v_xor_b32 v%d, 16, v%d' % (vD+1, vD)) if pitch % 32 == 0 else None

def wfrag_addrs(a, vWA, sbase):
    a('v_bfe_u32 v4, v%d, 2, 2' % vL)
    a('v_and_b32 v5, 3, v%d' % vL)
    a('v_and_b32 v8, 1, v%d' % vG)
    a('v_lshl_add_u32 v6, v%d, 3, v4' % vG)
    a('v_lshl_add_u32 v6, v8, 2, v6')
    a('v_lshlrev_b32 v6, 7, v6')
    a('v_lshrrev_b32 v7, 1, v4'); a('v_lshlrev_b32 v7, 2, v7'); a('v_or_b32 v7, v7, v8'); a('v_xor_b32 v7, v7, v5')
    a('v_lshl_add_u32 v6, v7, 4, v6')
    a('v_and_b32 v7, 1, v5')
    a('v_lshl_add_u32 v6, v7, 3, v6')
    if sbase: a('v_add_u32 v6, %s, v6' % sbase)
    for cg in range(2):
        for T in range(2):
            for e in range(2):
                x = cg*64 + T*8 + e*512
                if x: a('v_xor_b32 v%d, %d, v6' % (vWA+(cg*2+T)*2+e, x))
                else: a('v_mov_b32 v%d, v6' % (vWA))

def reduce4(a, ACC, RB, sW_, RED):
    a('s_lshl_b32 s8, s%d, 14' % sW_); a('s_add_u32 s8, s8, %d' % RED)
    a('v_add_u32 v4, s8, v%d' % vLIN)
    a('s_lshl_b32 s8, s%d, 12' % sW_); a('s_add_u32 s8, s8, %d' % RED)
    a('v_add_u32 v5, s8, v%d' % vLIN)
    for t in range(16):
        a('ds_write_b128 v4, %s offset:%d' % (vr(ACC+t*4, 4), t*1024))
    a('s_waitcnt lgkmcnt(0)'); a('s_barrier')
    for src in range(4):
        for nt in range(4):
            a('ds_read_b128 %s, v5 offset:%d' % (vr(RB+(src*4+nt)*4, 4), src*16384 + nt*1024))
    a('s_waitcnt lgkmcnt(8)')
    for k in range(16): a('v_add_f32 v%d, v%d, v%d' % (RB+k, RB+k, RB+16+k))
    a('s_waitcnt lgkmcnt(0)')
    for k in range(16): a('v_add_f32 v%d, v%d, v%d' % (RB+32+k, RB+32+k, RB+48+k))
    for k in range(16): a('v_add_f32 v%d, v%d, v%d' % (RB+k, RB+k, RB+32+k))

def unpack(a, dst, src, n):
    for k in range(n):
        a('v_lshlrev_b32 v%d, 16, v%d' % (dst+2*k, src+k))
        a('v_and_b32 v%d, 0xffff0000, v%d' % (dst+2*k+1, src+k))

def gen_p2(a, name):
    kernel_begin(a, name, 256)
    SX, SW, SWD, SH, SWS, SW3 = 44, 48, 52, 56, 60, 64
    sW_, sRB, sCT, sKS, sWO, sDUM, sT = 68, 69, 70, 71, 72, 73, 74
    ids(a, sW_)
    a('s_waitcnt lgkmcnt(0)')
    srd(a, SWS, 'ws', WS_SIZE)
    a('s_cmp_ge_u32 s4, 28')
    a.branch('s_cbranch_scc1 L_p2_side')
    vD, vWA, vAO = 16, 18, 26
    AF, WF, ACC, XR = 32, 96, 128, 192
    srd(a, SW, 'w2', 448*896); srd(a, SWD, 'w2', 448*896); srd(a, SH, 'ws', 2048*896); srd(a, SX, 'x', 2048*896)
    a('s_lshl_b32 s5, s3, 2'); a('s_and_b32 s6, s4, 3'); a('s_add_u32 s%d, s5, s6' % sRB); a('s_lshr_b32 s%d, s4, 2' % sCT)
    a('s_lshl_b32 s%d, s%d, 2' % (sKS, sW_)); a('s_cmp_eq_u32 s%d, 3' % sW_); a('s_cselect_b32 s%d, 11, s%d' % (sKS, sKS))
    a('s_cmp_ge_u32 s%d, 2' % sW_); a('s_cselect_b32 s%d, 0, s%d' % (SWD+2, SWD+2)); a('s_cselect_b32 s%d, 0x40000000, 0' % sDUM)
    dma_offs(a, vD, 896)
    a('s_mul_i32 s%d, s%d, %d' % (sWO, sKS, 32*896)); a('s_lshl_b32 s5, s%d, 7' % sCT); a('s_add_u32 s%d, s%d, s5' % (sWO, sWO))
    a('s_lshl_b32 s%d, s%d, 14' % (sT, sW_))
    a('s_mul_i32 s6, s%d, %d' % (sRB, 4*14336))
    for n in range(4):
        a('s_add_u32 s5, s%d, %d' % (sKS, n)); a('s_lshl_b32 s7, s5, 5')
        a('v_lshl_add_u32 v4, v%d, 3, s7' % vG)
        a('v_mov_b32 v5, -1')
        a('v_cmp_le_u32 vcc, 112, v4'); a('v_cndmask_b32 v5, v5, 1, vcc')
        a('v_cmp_le_u32 vcc, 224, v4'); a('v_cndmask_b32 v5, v5, -2, vcc')
        a('v_cmp_le_u32 vcc, 336, v4'); a('v_cndmask_b32 v5, v5, 2, vcc')
        a('v_add_u32 v5, v5, v%d' % vI)
        a('v_ashrrev_i32 v6, 4, v5'); a('v_and_b32 v5, 15, v5')
        a('v_mul_i32_i24 v6, 14336, v6')
        a('v_lshl_add_u32 v5, v%d, 4, v5' % vG)
        a('v_lshl_add_u32 v5, v5, 4, v6')
        a('s_lshl_b32 s7, s5, 10'); a('s_add_u32 s7, s7, s6')
        if n == 3: a('s_add_u32 s7, s7, s%d' % sDUM)
        a('v_add_u32 v%d, s7, v5' % (vAO+n))
    seq = {}
    for n in range(4):
        S = SWD if n == 3 else SW
        for q in range(4):
            a('s_add_u32 m0, s%d, %d' % (sT, n*4096 + q*1024))
            a('buffer_load_dwordx4 v%d, s[%d:%d], s%d offen lds' % (vD+(q&1), S, S+3, sWO))
            a('s_add_u32 s%d, s%d, 7168' % (sWO, sWO))
        for mt in range(4):
            if mt: a('v_add_u32 v%d, 14336, v%d' % (vAO+n, vAO+n))
            seq[n] = a('buffer_load_dwordx4 %s, v%d, s[%d:%d], 0 offen' % (vr(AF+(n*4+mt)*4, 4), vAO+n, SH, SH+3))
    a('v_mul_u32_u24 v4, 896, v%d' % vI); a('v_lshl_add_u32 v4, v%d, 4, v4' % vG)
    a('v_and_b32 v5, 1, v%d' % vG); a('v_lshl_add_u32 v4, v5, 3, v4'); a('v_xor_b32 v5, 8, v4')
    a('s_lshl_b32 s5, s%d, 6' % sRB); a('s_lshl_b32 s6, s%d, 4' % sW_); a('s_add_u32 s5, s5, s6'); a('s_mul_i32 s5, s5, 896')
    a('s_lshl_b32 s6, s%d, 7' % sCT); a('s_add_u32 s5, s5, s6')
    for cg in range(2):
        for T in range(2):
            seqX = a('buffer_load_dwordx2 %s, v%d, s[%d:%d], s5 offen offset:%d' % (vr(XR+(cg*2+T)*2, 2), 4+T, SX, SX+3, cg*64))
    wfrag_addrs(a, vWA, 's%d' % sT)
    def reads(n):
        return ['ds_read_b64_tr_b16 %s, v%d offset:%d' % (vr(WF+(n&1)*16+nt*4+e*2, 2), vWA+nt*2+e, n*4096) for nt in range(4) for e in range(2)]
    def mf(n):
        return [mfma(vr(ACC+(mt*4+nt)*4, 4), vr(WF+(n&1)*16+nt*4, 4), vr(AF+(n*4+mt)*4, 4), vr(ACC+(mt*4+nt)*4, 4) if n else '0')
                for nt in range(4) for mt in range(4)]
    a.wait_vm(seq[0])
    for r in reads(0): a(r)
    for n in range(4):
        a('s_waitcnt lgkmcnt(0)')
        M = mf(n)
        if n < 3:
            for m in M[:4]: a(m)
            a.wait_vm(seq[n+1])
            merge(a, M[4:], reads(n+1))
        else:
            for m in M: a(m)
    RB = 32
    reduce4(a, ACC, RB, sW_, 65536)
    a.wait_vm(seqX)
    unpack(a, 100, XR, 8)
    for k in range(16): a('v_add_f32 v%d, v%d, v%d' % (RB+k, RB+k, 100+k))
    for k in range(8): a('v_cvt_pk_bf16_f32 v%d, v%d, v%d' % (120+k, RB+2*k, RB+2*k+1))
    a('s_lshl_b32 s5, s%d, 2' % sRB); a('s_add_u32 s5, s5, s%d' % sW_); a('s_mul_i32 s6, s5, 14336')
    a('s_lshl_b32 s7, s%d, 11' % sCT); a('s_add_u32 s6, s6, s7'); a('s_add_u32 s6, s6, 0x%x' % X1_OFF)
    for cg in range(2):
        a('buffer_store_dwordx4 %s, v%d, s[%d:%d], s6 offen offset:%d' % (vr(120+cg*4, 4), vLIN, SWS, SWS+3, cg*1024))
    a('v_add_f32 v4, v%d, v%d' % (RB, RB+1)); a('v_mul_f32 v5, v%d, v%d' % (RB, RB)); a('v_fmac_f32 v5, v%d, v%d' % (RB+1, RB+1))
    for k in range(2, 16):
        a('v_add_f32 v4, v4, v%d' % (RB+k)); a('v_fmac_f32 v5, v%d, v%d' % (RB+k, RB+k))
    a('v_permlane32_swap_b32 v4, v5'); a('v_add_f32 v4, v4, v5'); a('v_mov_b32 v5, v4')
    a('v_permlane16_swap_b32 v4, v5'); a('v_add_f32 v4, v4, v5')
    a('v_lshrrev_b32 v6, 5, v%d' % vL); a('v_lshlrev_b32 v6, 2, v6'); a('v_lshl_add_u32 v6, v%d, 3, v6' % vI)
    a('s_lshl_b32 s5, s5, 7'); a('s_lshl_b32 s7, s%d, 14' % sCT); a('s_add_u32 s5, s5, s7'); a('s_add_u32 s5, s5, 0x%x' % ST_OFF)
    a('buffer_store_dword v4, v6, s[%d:%d], s5 offen' % (SWS, SWS+3))
    a.branch('s_branch L_end_%s' % name)
    a.label('L_p2_side')
    a('s_sub_u32 s5, s4, 28'); a('s_lshl_b32 s5, s5, 3'); a('s_add_u32 s5, s5, s3')
    a('s_cmp_ge_u32 s5, 16')
    a.branch('s_cbranch_scc1 L_p2_cs')
    a('s_lshl_b32 s6, s5, 13'); a('s_lshl_b32 s7, s%d, 11' % sW_); a('s_add_u32 s6, s6, s7'); a('s_add_u32 s6, s6, 0x%x' % KVP_OFF)
    sq = []
    for rt in range(16):
        for Tf in range(2):
            sq.append(a('buffer_load_dwordx4 %s, v%d, s[%d:%d], s6 offen offset:%d' % (vr(32+(rt*2+Tf)*4, 4), vLIN, SWS, SWS+3, Tf*1024)))
        a('s_add_u32 s6, s6, 131072')
    for rt in range(1, 16):
        a.wait_vm(sq[rt*2+1])
        for k in range(8): a('v_add_f32 v%d, v%d, v%d' % (32+k, 32+k, 32+rt*8+k))
    for k in range(4): a('v_cvt_pk_bf16_f32 v%d, v%d, v%d' % (16+k, 32+2*k, 33+2*k))
    a('s_lshl_b32 s6, s5, 2'); a('s_add_u32 s6, s6, s%d' % sW_); a('s_lshl_b32 s6, s6, 10'); a('s_add_u32 s6, s6, 0x%x' % KVOP_OFF)
    a('buffer_store_dwordx4 v[16:19], v%d, s[%d:%d], s6 offen' % (vLIN, SWS, SWS+3))
    a.branch('s_branch L_end_%s' % name)
    a.label('L_p2_cs')
    srd(a, SW3, 'w3', 448*3584)
    a('s_sub_u32 s5, s5, 16')
    a('v_lshrrev_b32 v4, 4, v0'); a('v_and_b32 v5, 15, v0')
    a('v_mul_u32_u24 v6, %d, v4' % (28*3584)); a('v_lshl_add_u32 v6, v5, 4, v6')
    a('v_mov_b32 v7, 0x7fffffff'); a('v_cmp_gt_u32 vcc, 14, v5'); a('v_cndmask_b32 v6, v7, v6, vcc')
    a('s_mul_i32 s6, s5, 224')
    sq = []
    for n in range(28):
        sq.append(a('buffer_load_dwordx4 %s, v6, s[%d:%d], s6 offen' % (vr(32+n*4, 4), SW3, SW3+3)))
        a('s_add_u32 s6, s6, 3584')
    for k in range(8): a('v_mov_b32 v%d, 0' % (16+k))
    for n in range(28):
        a.wait_vm(sq[n])
        unpack(a, 24, 32+n*4, 4)
        for k in range(8): a('v_add_f32 v%d, v%d, v%d' % (16+k, 16+k, 24+k))
    a('v_lshlrev_b32 v6, 5, v0')
    a('ds_write_b128 v6, v[16:19]'); a('ds_write_b128 v6, v[20:23] offset:16')
    a('s_waitcnt lgkmcnt(0)'); a('s_barrier')
    a('v_and_b32 v6, 127, v0'); a('v_lshlrev_b32 v6, 2, v6')
    for rg in range(16): a('ds_read_b32 v%d, v6 offset:%d' % (32+rg, rg*512))
    a('s_waitcnt lgkmcnt(0)')
    for rg in range(1, 16): a('v_add_f32 v32, v32, v%d' % (32+rg))
    a('s_mul_i32 s6, s5, 448'); a('s_add_u32 s6, s6, 0x%x' % CS3_OFF)
    a('v_lshlrev_b32 v6, 2, v0'); a('v_add_u32 v6, s6, v6')
    a('v_cmp_gt_u32 vcc, 112, v0'); a('v_cndmask_b32 v6, v7, v6, vcc')
    a('buffer_store_dword v32, v6, s[%d:%d], 0 offen' % (SWS, SWS+3))
    kernel_end(a, name)

def gen_p3(a, name):
    kernel_begin(a, name, 256)
    SW, SWS = 48, 60
    sW_, sRT, sCT, sSUB, sPAR, sWO, sLB, sA, sMT, sC2, sT = 68, 69, 70, 71, 72, 73, 74, 75, 77, 78, 79
    ids(a, sW_)
    a('s_waitcnt lgkmcnt(0)')
    srd(a, SWS, 'ws', WS_SIZE)
    a('s_cmp_ge_u32 s4, 28')
    a.branch('s_cbranch_scc1 L_p3_o')
    vD, vWA, vC1 = 16, 18, 34
    WF, ACC, STR, GRG, CSR = 40, 120, 184, 212, 220
    srd(a, SW, 'w3', 448*3584)
    a('s_lshl_b32 s5, s3, 1'); a('s_and_b32 s6, s4, 1'); a('s_add_u32 s%d, s5, s6' % sRT); a('s_lshr_b32 s%d, s4, 1' % sCT)
    a('s_lshr_b32 s%d, s%d, 1' % (sSUB, sW_)); a('s_and_b32 s%d, s%d, 1' % (sPAR, sW_))
    dma_offs(a, vD, 3584)
    a('s_lshl_b32 s5, s%d, 8' % sCT); a('s_lshl_b32 s6, s%d, 7' % sSUB); a('s_add_u32 s5, s5, s6')
    a('s_mul_i32 s6, s%d, %d' % (sPAR, 32*3584)); a('s_add_u32 s%d, s5, s6' % sWO)
    a('s_mul_i32 s5, s%d, 57344' % sSUB); a('s_lshl_b32 s6, s%d, 12' % sPAR); a('s_add_u32 s%d, s5, s6' % sLB)
    a('s_lshl_b32 s5, s%d, 3' % sRT); a('s_lshl_b32 s6, s%d, 1' % sW_); a('s_add_u32 s%d, s5, s6' % sMT)
    a('s_mul_i32 s5, s%d, 14336' % sMT); a('s_add_u32 s%d, s5, 0x%x' % (sA, X1_OFF)); a('s_add_u32 s%d, s%d, 14336' % (sA+1, sA))
    seq = {}
    for j in range(7):
        for q in range(4):
            a('s_add_u32 m0, s%d, %d' % (sLB, j*8192 + q*1024))
            a('buffer_load_dwordx4 v%d, s[%d:%d], s%d offen lds' % (vD+(q&1), SW, SW+3, sWO))
            a('s_add_u32 s%d, s%d, %d' % (sWO, sWO, 8*3584 if q < 3 else 40*3584))
        for k2 in range(2):
            for mt in range(2):
                ks = 2*j + k2
                seq[j] = a('buffer_load_dwordx4 %s, v%d, s[%d:%d], s%d offen offset:%d' % (ar((ks*2+mt)*4, 4), vLIN, SWS, SWS+3, sA+mt, k2*1024))
        a('s_add_u32 s%d, s%d, 2048' % (sA, sA)); a('s_add_u32 s%d, s%d, 2048' % (sA+1, sA+1))
    wfrag_addrs(a, vWA, None)
    for k in range(8): a('v_add_u32 v%d, 57344, v%d' % (vWA+8+k, vWA+k))
    a('s_mov_b32 s%d, %s' % (sC2, fbits(GC2))); a('v_mov_b32 v%d, %s' % (vC1, fbits(GC1)))
    def epi_loads():
        a('v_lshlrev_b32 v4, 3, v%d' % vI)
        a('s_lshl_b32 s5, s%d, 7' % sMT); a('s_add_u32 s5, s5, 0x%x' % ST_OFF)
        for ct in range(7):
            for mt in range(2):
                a('buffer_load_dwordx2 %s, v4, s[%d:%d], s5 offen offset:%d' % (vr(STR+(mt*7+ct)*2, 2), SWS, SWS+3, mt*128))
            a('s_add_u32 s5, s5, 16384')
        a('v_lshlrev_b32 v5, 2, v%d' % vI)
        a('s_lshl_b32 s5, s%d, 6' % sMT); a('s_add_u32 s5, s5, 0x%x' % G_OFF)
        for mt in range(2):
            a('buffer_load_dword v%d, v5, s[%d:%d], s5 offen offset:%d' % (GRG+mt, SWS, SWS+3, mt*64))
        a('v_lshlrev_b32 v6, 5, v%d' % vG); a('v_and_b32 v7, 1, v%d' % vG); a('v_lshl_add_u32 v6, v7, 4, v6'); a('v_xor_b32 v7, 16, v6')
        a('s_lshl_b32 s5, s%d, 9' % sCT); a('s_add_u32 s5, s5, 0x%x' % CS3_OFF)
        for cg in range(4):
            for T in range(2):
                s = a('buffer_load_dwordx4 %s, v%d, s[%d:%d], s5 offen offset:%d' % (vr(CSR+(cg*2+T)*4, 4), 6+T, SWS, SWS+3, cg*128))
        return s
    def reads(ks):
        b = ks & 1
        return ['ds_read_b64_tr_b16 %s, v%d offset:%d' % (vr(WF+b*32+tile*4+e*2, 2), vWA+(tile>>2)*8+(tile&3)*2+e, ks*4096)
                for tile in range(8) for e in range(2)]
    def mfmas(ks):
        b = ks & 1
        return [mfma(vr(ACC+(mt*8+tile)*4, 4), vr(WF+b*32+tile*4, 4), ar((ks*2+mt)*4, 4), vr(ACC+(mt*8+tile)*4, 4) if ks else '0')
                for tile in range(8) for mt in range(2)]
    a.wait_vm(seq[0]); a('s_barrier')
    for r in reads(0): a(r)
    for ks in range(14):
        a('s_waitcnt lgkmcnt(0)')
        M = mfmas(ks)
        if ks == 13:
            for m in M: a(m)
        elif ks & 1:
            for m in M[:4]: a(m)
            a.wait_vm(seq[(ks+1)>>1]); a('s_barrier')
            merge(a, M[4:], reads(ks+1))
        else:
            merge(a, M, reads(ks+1))
        if ks == 5: seqE = epi_loads()
    a.wait_vm(seqE)
    vNM, vRS, vR2 = 10, 12, 14
    for mt in range(2):
        S = STR + mt*14
        for ct in range(1, 7):
            a('v_add_f32 v%d, v%d, v%d' % (S, S, S+2*ct)); a('v_add_f32 v%d, v%d, v%d' % (S+1, S+1, S+2*ct+1))
        a('v_mul_f32 v%d, %s, v%d' % (vNM+mt, fbits(-1.0/448), S))
        a('v_mul_f32 v%d, %s, v%d' % (S+1, fbits(1.0/448), S+1))
        a('v_fma_f32 v%d, -v%d, v%d, v%d' % (S+1, vNM+mt, vNM+mt, S+1))
        a('v_add_f32 v%d, %s, v%d' % (S+1, fbits(1e-5), S+1))
        a('v_rsq_f32 v%d, v%d' % (vRS+mt, S+1))
        a('v_sub_f32 v%d, 1.0, v%d' % (GRG+mt, GRG+mt))
        a('v_mul_f32 v%d, v%d, v%d' % (vR2+mt, vRS+mt, GRG+mt))
    a('s_mul_i32 s5, s%d, %d' % (sMT, 72*1024)); a('s_lshl_b32 s6, s%d, 12' % sCT); a('s_add_u32 s5, s5, s6'); a('s_add_u32 s5, s5, 0x%x' % (A4_OFF + 16*1024))
    a('s_add_u32 s6, s5, %d' % (72*1024))
    for cg in range(4):
        streams = []
        for mt in range(2):
            A0 = ACC + (mt*8 + 2*cg)*4
            T = 40 + ((cg&1)*2+mt)*20
            streams.append(gelu_stream(['v%d' % (A0+k) for k in range(8)], ['v%d' % (CSR+cg*8+k) for k in range(8)], T, T+16,
                                       'v%d' % (vNM+mt), 'v%d' % (vRS+mt), 'v%d' % (vR2+mt), 'v%d' % vC1, 's%d' % sC2))
        interleave(a, streams)
        for mt in range(2):
            a('buffer_store_dwordx4 %s, v%d, s[%d:%d], s%d offen offset:%d' % (vr(40+((cg&1)*2+mt)*20+16, 4), vLIN, SWS, SWS+3, 5+mt, cg*1024))
    a.branch('s_branch L_end_%s' % name)
    a.label('L_p3_o')
    a('s_sub_u32 s5, s4, 28'); a('s_lshl_b32 s5, s5, 3'); a('s_add_u32 s5, s5, s3')
    a('s_lshr_b32 s6, s5, 1'); a('s_and_b32 s7, s5, 1')
    a('s_lshl_b32 s8, s7, 6'); a('s_lshl_b32 s9, s%d, 4' % sW_); a('s_add_u32 s%d, s8, s9' % sMT)
    KO, ZF, PQ, GQ = 16, 32, 40, 168
    a('s_lshl_b32 s8, s6, 12'); a('s_add_u32 s8, s8, 0x%x' % KVOP_OFF)
    for q in range(4):
        sk = a('buffer_load_dwordx4 %s, v%d, s[%d:%d], s8 offen offset:%d' % (vr(KO+q*4, 4), vLIN, SWS, SWS+3, q*1024))
    a('s_lshl_b32 s8, s%d, 15' % sMT); a('s_lshl_b32 s9, s6, 11'); a('s_add_u32 s8, s8, s9'); a('s_add_u32 s8, s8, 0x%x' % PHIQ_OFF)
    a('v_lshlrev_b32 v5, 2, v%d' % vI)
    a('s_lshl_b32 s9, s%d, 6' % sMT); a('s_add_u32 s9, s9, 0x%x' % G_OFF)
    sq = []
    for m in range(16):
        for s in range(2):
            a('buffer_load_dwordx4 %s, v%d, s[%d:%d], s8 offen offset:%d' % (vr(PQ+(m*2+s)*4, 4), vLIN, SWS, SWS+3, s*1024))
        sq.append(a('buffer_load_dword v%d, v5, s[%d:%d], s9 offen offset:%d' % (GQ+m, SWS, SWS+3, m*64)))
        a('s_add_u32 s8, s8, 32768')
    a.wait_vm(sk)
    for s in range(2):
        for k in range(4):
            a('v_mov_b32_dpp v%d, v%d row_newbcast:12 row_mask:0xf bank_mask:0xf' % (ZF+s*4+k, KO+(s*2+1)*4+k))
    a('s_mul_i32 s8, s%d, %d' % (sMT, 72*1024)); a('s_lshl_b32 s9, s6, 10'); a('s_add_u32 s8, s8, s9'); a('s_add_u32 s8, s8, 0x%x' % A4_OFF)
    OD = 184
    for m in range(16):
        a.wait_vm(sq[m])
        O = OD + (m&1)*16
        for s in range(2):
            pq = vr(PQ+(m*2+s)*4, 4)
            for Td in range(2):
                d = vr(O+Td*4, 4); a(mfma(d, vr(KO+(s*2+Td)*4, 4), pq, d if s else '0'))
            d = vr(O+8, 4); a(mfma(d, vr(ZF+s*4, 4), pq, d if s else '0'))
        a('v_add_f32 v%d, %s, v%d' % (O+8, fbits(1e-6), O+8))
        a('v_rcp_f32 v%d, v%d' % (O+8, O+8))
        a('v_mul_f32 v%d, v%d, v%d' % (O+8, O+8, GQ+m))
        for k in range(8): a('v_mul_f32 v%d, v%d, v%d' % (O+k, O+k, O+8))
        for k in range(4): a('v_cvt_pk_bf16_f32 v%d, v%d, v%d' % (O+12+k, O+2*k, O+2*k+1))
        a('buffer_store_dwordx4 %s, v%d, s[%d:%d], s8 offen' % (vr(O+12, 4), vLIN, SWS, SWS+3))
        a('s_add_u32 s8, s8, %d' % (72*1024))
    kernel_end(a, name)

def gen_p4(a, name):
    kernel_begin(a, name, 224)
    SWO_, SW4, SWS, SO = 48, 52, 60, 64
    sW_, sRB, sCT, sWO, sLB, sA, sT = 68, 69, 70, 71, 72, 73, 77
    D = 7
    ids(a, sW_)
    a('s_waitcnt lgkmcnt(0)')
    srd(a, SWS, 'ws', WS_SIZE); srd(a, SWO_, 'wo', 448*896); srd(a, SW4, 'w4', 1792*896); srd(a, SO, 'out', 2048*896)
    vD, vD3, vWA = 16, 18, 20
    WF, ACC, XR, GQ = 32, 128, 192, 200
    a('s_lshl_b32 s5, s3, 2'); a('s_and_b32 s6, s4, 3'); a('s_add_u32 s%d, s5, s6' % sRB); a('s_lshr_b32 s%d, s4, 2' % sCT)
    dma_offs(a, vD, 896)
    a('v_lshrrev_b32 v4, 3, v%d' % vL); a('v_mov_b32 v5, 0x7fffffff'); a('v_cmp_gt_u32 vcc, 4, v4')
    a('v_cndmask_b32 v%d, v%d, v5, vcc' % (vD3, vD+1))
    a('s_mul_i32 s%d, s%d, %d' % (sLB, sW_, D*4096))
    a('s_mul_i32 s5, s%d, %d' % (sRB, 4*72*1024)); a('s_lshl_b32 s6, s%d, 10' % sW_); a('s_add_u32 s5, s5, s6'); a('s_add_u32 s%d, s5, 0x%x' % (sA, A4_OFF))
    for mt in range(1, 4): a('s_add_u32 s%d, s%d, %d' % (sA+mt, sA, mt*72*1024))
    a('s_mul_i32 s%d, s%d, %d' % (sWO, sW_, 28*896)); a('s_lshl_b32 s5, s%d, 7' % sCT); a('s_add_u32 s%d, s%d, s5' % (sWO, sWO))
    seq = {}
    def issue(n):
        slot = n % D
        for q in range(4):
            a('s_add_u32 m0, s%d, %d' % (sLB, slot*4096 + q*1024))
            if n < 4:
                if q < 3:
                    a('buffer_load_dwordx4 v%d, s[%d:%d], s%d offen lds' % (vD+(q&1), SWO_, SWO_+3, sWO))
                    a('s_add_u32 s%d, s%d, %d' % (sWO, sWO, 7168 if q < 2 else 3584))
                else:
                    a('buffer_load_dwordx4 v%d, s[%d:%d], s%d offen lds' % (vD3, SWO_, SWO_+3, sWO))
                    if n < 3: a('s_add_u32 s%d, s%d, %d' % (sWO, sWO, (112-20)*896))
                    else:
                        a('s_mul_i32 s%d, s%d, %d' % (sWO, sW_, 32*896)); a('s_lshl_b32 s5, s%d, 7' % sCT); a('s_add_u32 s%d, s%d, s5' % (sWO, sWO))
            else:
                a('buffer_load_dwordx4 v%d, s[%d:%d], s%d offen lds' % (vD+(q&1), SW4, SW4+3, sWO))
                a('s_add_u32 s%d, s%d, %d' % (sWO, sWO, 7168 if q < 3 else (128-24)*896))
        for mt in range(4):
            seq[n] = a('buffer_load_dwordx4 %s, v%d, s[%d:%d], s%d offen' % (ar((slot*4+mt)*4, 4), vLIN, SWS, SWS+3, sA+mt))
            a('s_add_u32 s%d, s%d, 4096' % (sA+mt, sA+mt))
    for n in range(D): issue(n)
    wfrag_addrs(a, vWA, 's%d' % sLB)
    def reads(n):
        return ['ds_read_b64_tr_b16 %s, v%d offset:%d' % (vr(WF+(n&1)*16+nt*4+e*2, 2), vWA+nt*2+e, (n%D)*4096) for nt in range(4) for e in range(2)]
    def mf(n):
        return [mfma(vr(ACC+(mt*4+nt)*4, 4), vr(WF+(n&1)*16+nt*4, 4), ar(((n%D)*4+mt)*4, 4), vr(ACC+(mt*4+nt)*4, 4) if n else '0')
                for nt in range(4) for mt in range(4)]
    N = 18
    a.wait_vm(seq[0])
    for r in reads(0): a(r)
    for n in range(N):
        a('s_waitcnt lgkmcnt(0)')
        M = mf(n)
        if n < N-1:
            for m in M[:4]: a(m)
            a.wait_vm(seq[n+1])
            merge(a, M[4:], reads(n+1))
        else:
            for m in M: a(m)
        if n + D < N: issue(n + D)
        if n == N - D:
            a('s_lshl_b32 s5, s%d, 2' % sRB); a('s_add_u32 s5, s5, s%d' % sW_); a('s_mul_i32 s6, s5, 14336')
            a('s_lshl_b32 s7, s%d, 11' % sCT); a('s_add_u32 s6, s6, s7'); a('s_add_u32 s6, s6, 0x%x' % X1_OFF)
            for cg in range(2):
                a('buffer_load_dwordx4 %s, v%d, s[%d:%d], s6 offen offset:%d' % (vr(XR+cg*4, 4), vLIN, SWS, SWS+3, cg*1024))
            a('v_lshlrev_b32 v4, 2, v%d' % vI)
            a('s_lshl_b32 s6, s5, 6'); a('s_add_u32 s6, s6, 0x%x' % G_OFF)
            seqE = a('buffer_load_dword v%d, v4, s[%d:%d], s6 offen' % (GQ, SWS, SWS+3))
            a('s_mov_b32 s%d, s5' % sT)
    a('s_barrier')
    RB = 32
    reduce4(a, ACC, RB, sW_, 0)
    a.wait_vm(seqE)
    unpack(a, 100, XR, 8)
    a('v_sub_f32 v%d, 1.0, v%d' % (GQ, GQ))
    for k in range(16): a('v_fmac_f32 v%d, v%d, v%d' % (RB+k, 100+k, GQ))
    for k in range(8): a('v_cvt_pk_bf16_f32 v%d, v%d, v%d' % (120+k, RB+2*k, RB+2*k+1))
    a('v_mul_u32_u24 v4, 896, v%d' % vI); a('v_lshl_add_u32 v4, v%d, 4, v4' % vG)
    a('v_and_b32 v5, 1, v%d' % vG); a('v_lshl_add_u32 v4, v5, 3, v4'); a('v_xor_b32 v5, 8, v4')
    a('s_mul_i32 s5, s%d, %d' % (sT, 16*896)); a('s_lshl_b32 s6, s%d, 7' % sCT); a('s_add_u32 s5, s5, s6')
    for cg in range(2):
        for T in range(2):
            a('buffer_store_dwordx2 %s, v%d, s[%d:%d], s5 offen offset:%d' % (vr(120+cg*4+T*2, 2), 4+T, SO, SO+3, cg*64))
    kernel_end(a, name)
```

```python
import sys
from gen_common import *
from gen_p1e import gen_p1_full

def build(fn, kernels):
    a = Asm()
    a.raw('.amdgcn_target "amdgcn-amd-amdhsa--gfx950"'); a.raw('.text')
    a.raw('.p2align 8'); a.raw('L_code_start:')
    hdr = ''; descs = ''
    for (name, f, grid, lds, vg, acc) in kernels:
        a.vm_issued = 0; a.lgkm_issued = 0
        f(a, name)
        hdr += '; @launch kernel=%s grid=(%d,1,1) block=(256,1,1) lds=%d\n' % (name, grid, lds)
        descs += desc(name, vg, acc)
    a.raw('L_code_end:')
    s = hdr + a.text() + '.section .rodata,"a"\n' + descs
    open(fn, 'w').write(s)
    print('nops', a.nops, 'lines', len(a.lines))

K = [('p1_kernel', gen_p1_full, 256, 163840, 312, 256)]
if __name__ == '__main__':
    try:
        from gen_p234 import gen_p2, gen_p3, gen_p4
        K += [('p2_kernel', gen_p2, 256, 131072, 256, 256), ('p3_kernel', gen_p3, 256, 114688, 384, 256), ('p4_kernel', gen_p4, 224, 114688, 384, 256)]
    except ImportError:
        pass
    build(sys.argv[1] if len(sys.argv) > 1 else 'k.s', K)
```

```python
import sys
sys.path.insert(0,'work')
from asmlib import *
def desc(name, vg=128, sg=64):
    return '''.p2align 6
.amdhsa_kernel %s
  .amdhsa_next_free_vgpr %d
  .amdhsa_next_free_sgpr %d
  .amdhsa_accum_offset %d
  .amdhsa_group_segment_fixed_size 0
  .amdhsa_kernarg_size 32
  .amdhsa_user_sgpr_count 2
  .amdhsa_user_sgpr_kernarg_segment_ptr 1
  .amdhsa_system_sgpr_workgroup_id_x 1
.end_amdhsa_kernel
''' % (name, vg, sg, vg)
def prologue(a, name):
    a.raw('.globl %s' % name); a.raw('.p2align 8'); a.raw('.type %s,@function' % name); a.raw(name+':')
    a('s_cmp_ge_u32 s2, 256')
    a.branch('s_cbranch_scc1 L_end_%s' % name)
    a('s_load_dwordx2 s[4:5], s[0:1], 24')
    a('s_load_dwordx2 s[6:7], s[0:1], 8')
    a('s_waitcnt lgkmcnt(0)')
    a('s_mov_b32 s8, s4'); a('s_and_b32 s9, s5, 0xffff'); a('s_mov_b32 s10, 0x10000000'); a('s_mov_b32 s11, 0x00020000')
    a('s_mov_b32 s12, s6'); a('s_and_b32 s13, s7, 0xffff'); a('s_mov_b32 s14, 0x100000'); a('s_mov_b32 s15, 0x00020000')
def epilogue(a, name, slot):
    a('s_memrealtime s[20:21]')
    a('s_waitcnt lgkmcnt(0)')
    a('s_sub_u32 s20, s20, s18')
    a('v_mov_b32 v100, s20')
    a('v_lshrrev_b32 v101, 6, v0')
    a('v_lshlrev_b32 v101, 2, v101')
    a('s_lshl_b32 s3, s2, 6')
    a('s_add_u32 s3, s3, %d' % (slot*16384))
    a('v_add_u32 v101, s3, v101')
    a('buffer_store_dword v100, v101, s[12:15], 0 offen')
    a('s_waitcnt vmcnt(0)')
    a.label('L_end_%s' % name)
    a('s_endpgm')
TOT = 256*1024
def rd(a, name, slot, nw, base, mode, passes=1, lds=False, rot=False):
    prologue(a, name)
    n = TOT // nw // 1024
    a('v_lshrrev_b32 v2, 6, v0'); a('v_and_b32 v3, 63, v0'); a('v_readfirstlane_b32 s17, v2')
    if mode == 'uniq': a('s_mul_i32 s3, s2, %d' % TOT)
    elif mode == 'xcd': a('s_and_b32 s3, s2, 7'); a('s_mul_i32 s3, s3, %d' % TOT)
    else: a('s_mov_b32 s3, 0')
    a('s_add_u32 s3, s3, %d' % base)
    a('v_lshlrev_b32 v1, 4, v0')
    a('s_lshl_b32 s22, s17, 13')
    if rot:
        a('s_lshr_b32 s23, s2, 3'); a('s_mul_i32 s23, s23, %d' % (TOT//32))
    else: a('s_mov_b32 s23, 0')
    for p in range(passes):
        if p == passes-1:
            a('s_barrier'); a('s_memrealtime s[18:19]'); a('s_waitcnt lgkmcnt(0)')
        W = 16
        for i in range(n):
            if i >= W: a('s_waitcnt vmcnt(%d)' % (W-1))
            a('s_add_u32 s16, s23, %d' % (i*nw*1024)); a('s_and_b32 s16, s16, %d' % (TOT-1)); a('s_add_u32 s16, s16, s3')
            if lds:
                a('s_add_u32 m0, s22, %d' % ((i%8)*1024))
                a('buffer_load_dwordx4 v1, s[8:11], s16 offen lds')
            else:
                a('buffer_load_dwordx4 %s, v1, s[8:11], s16 offen' % vr(8+(i%W)*4, 4))
        a('s_waitcnt vmcnt(0)')
    epilogue(a, name, slot)
def wr(a, name, slot, nw, base):
    prologue(a, name)
    a('s_mul_i32 s3, s2, 8192'); a('s_add_u32 s3, s3, %d' % base)
    a('v_lshlrev_b32 v1, 4, v0')
    a('s_memrealtime s[18:19]')
    for i in range(2):
        a('buffer_store_dwordx4 v[8:11], v1, s[8:11], s3 offen offset:%d' % 0)
        a('s_add_u32 s3, s3, 4096')
    epilogue(a, name, slot)
if __name__ == "__main__":
  M = 1<<20
  seq = []
  base = 0
  def add(f, nw, *args, **kw):
      seq.append(('k%d_kernel' % len(seq), f, nw, args, kw))
  names = []
  for nw in (4, 8, 16):
      add(rd, nw, base, 'uniq'); names.append('uniq cold nw%d' % nw); base += 64*M
  base = 192*M
  for nw in (4, 8, 16):
      add(rd, nw, base, 'xcd'); names.append('xcd cold nw%d' % nw); base += 2*M
  for nw in (4, 16):
      add(rd, nw, base, 'xcd', rot=True); names.append('xcd cold rot nw%d' % nw); base += 2*M
  for nw in (4, 8, 16):
      add(rd, nw, base, 'xcd', passes=2); names.append('xcd warm nw%d' % nw); base += 2*M
  for nw in (4, 16):
      add(rd, nw, base, 'xcd', passes=2, lds=True); names.append('xcd warm lds nw%d' % nw); base += 2*M
  for nw in (4, 16):
      add(wr, 4, base); names.append('wr')
      add(rd, nw, base, 'xcd'); names.append('xcd mall nw%d' % nw); base += 2*M
  for nw in (4,):
      add(wr, 4, base); names.append('wr')
      add(rd, nw, base, 'xcd', rot=True); names.append('xcd mall rot nw%d' % nw); base += 2*M
  a = Asm()
  a.raw('.amdgcn_target "amdgcn-amd-amdhsa--gfx950"'); a.raw('.text')
  hdr = ''; d = ''
  for i, (name, f, nw, args, kw) in enumerate(seq):
      f(a, name, i, nw, *args, **kw)
      hdr += '; @launch kernel=%s grid=(256,1,1) block=(%d,1,1) lds=131072\n' % (name, nw*64)
      d += desc(name)
  open('mb4.s', 'w').write(hdr + a.text() + '.section .rodata,"a"\n' + d)
  open('mb4_names.txt', 'w').write('\n'.join(names))
```

```python
import sys
sys.path.insert(0,'work')
from asmlib import *
from mb4 import prologue
def desc(name, vg=128, sg=64):
    return '''.p2align 6
.amdhsa_kernel %s
  .amdhsa_next_free_vgpr %d
  .amdhsa_next_free_sgpr %d
  .amdhsa_accum_offset %d
  .amdhsa_group_segment_fixed_size 0
  .amdhsa_kernarg_size 32
  .amdhsa_user_sgpr_count 2
  .amdhsa_user_sgpr_kernarg_segment_ptr 1
  .amdhsa_system_sgpr_workgroup_id_x 1
.end_amdhsa_kernel
''' % (name, vg, sg, vg)
def zero(a, name):
    prologue(a, name)
    a('v_mov_b32 v4, 0'); a('v_mov_b32 v5, 0'); a('v_mov_b32 v6, 0'); a('v_mov_b32 v7, 0')
    a('v_lshlrev_b32 v1, 4, v0'); a('s_lshl_b32 s3, s2, 12')
    a('buffer_store_dwordx4 v[4:7], v1, s[8:11], s3 offen')
    a.label('L_end_%s' % name); a('s_endpgm')
NR = 6
def st(a, k):
    a('s_memrealtime s[30:31]'); a('s_waitcnt lgkmcnt(0)'); a('v_writelane_b32 v100, s30, %d' % k)
def bar(a, name, slot, sm, am, pm, grp, sleep=0, ldm='', nst=2):
    prologue(a, name)
    a('v_mov_b32 v100, 0'); a('v_mov_b32 v101, 0')
    a('v_lshrrev_b32 v2, 6, v0'); a('v_readfirstlane_b32 s17, v2')
    if grp == 'xcd':
        a('s_and_b32 s20, s2, 7'); a('s_lshr_b32 s21, s2, 3')
    else:
        a('s_lshr_b32 s20, s2, 5'); a('s_and_b32 s21, s2, 31')
    a('v_lshlrev_b32 v1, 4, v0')
    a('v_mov_b32 v3, 1'); a('v_mov_b32 v8, 0')
    DATA = 0x100000 + slot*0x1000000
    for r in range(NR):
        a('s_lshl_b32 s22, s20, 5'); a('s_add_u32 s23, s22, s21'); a('s_lshl_b32 s23, s23, 13'); a('s_add_u32 s23, s23, 0x%x' % (DATA + r*0x200000))
        a('s_add_u32 s24, s21, 5'); a('s_and_b32 s24, s24, 31'); a('s_add_u32 s25, s24, s22'); a('s_lshl_b32 s24, s25, 13'); a('s_add_u32 s24, s24, 0x%x' % (DATA + r*0x200000))
        a('s_add_u32 s26, s23, 77')
        a('s_add_u32 s27, s24, 77')
        for k in range(4): a('v_mov_b32 v%d, s26' % (4+k))
        a('s_lshl_b32 s28, s20, 8'); a('s_add_u32 s28, s28, %d' % (slot*0x10000 + r*0x1000))
        st(a, r*8+0)
        for q in range(nst):
            a('buffer_store_dwordx4 v[4:7], v1, s[8:11], s23 offen offset:%d %s' % (q*4096 if q < 1 else 0, sm) if q == 0 else
              'buffer_store_dwordx4 v[4:7], v1, s[8:11], s29 offen %s' % sm)
            if q == 0: a('s_add_u32 s29, s23, 4096')
        a('s_waitcnt vmcnt(0)')
        a('s_barrier')
        a('s_cmp_lg_u32 s17, 0')
        a.branch('s_cbranch_scc1 L_%s_w%d' % (name, r))
        st(a, r*8+1)
        a('s_mov_b64 exec, 1')
        a('buffer_atomic_add v3, v8, s[8:11], s28 offen %s' % am)
        a('s_mov_b32 s32, 0')
        a.label('L_%s_p%d' % (name, r))
        if pm.startswith('atom'):
            a('v_mov_b32 v9, 0')
            a('buffer_atomic_add v9, v8, s[8:11], s28 offen sc0 %s' % pm[4:])
        else:
            a('buffer_load_dword v9, v8, s[8:11], s28 offen %s' % pm)
        a('s_add_u32 s32, s32, 1')
        a('s_waitcnt vmcnt(0)')
        a('v_readfirstlane_b32 s33, v9')
        a('s_cmp_ge_u32 s33, 32')
        a.branch('s_cbranch_scc1 L_%s_d%d' % (name, r))
        if sleep: a('s_sleep %d' % sleep)
        a('s_cmp_lt_u32 s32, 300')
        a.branch('s_cbranch_scc1 L_%s_p%d' % (name, r))
        a.label('L_%s_d%d' % (name, r))
        a('s_mov_b64 exec, -1')
        st(a, r*8+2)
        a('v_writelane_b32 v100, s32, %d' % (r*8+4))
        a.label('L_%s_w%d' % (name, r))
        a('s_barrier')
        a('buffer_load_dwordx4 v[10:13], v1, s[8:11], s24 offen %s' % ldm)
        a('s_add_u32 s29, s24, 4096')
        a('buffer_load_dwordx4 v[14:17], v1, s[8:11], s29 offen %s' % ldm)
        a('s_waitcnt vmcnt(0)')
        st(a, r*8+3)
        for k in range(8):
            a('v_cmp_ne_u32 vcc, s27, v%d' % (10+k))
            a('v_addc_co_u32 v101, vcc, 0, v101, vcc')
    a('v_cmp_ne_u32 vcc, 0, v101')
    a('s_bcnt1_i32_b64 s34, vcc')
    a('v_writelane_b32 v100, s34, 63')
    a('v_lshlrev_b32 v1, 2, v0')
    a('s_lshl_b32 s3, s2, 10'); a('s_add_u32 s3, s3, %d' % (slot*0x40000))
    a('s_mov_b32 s14, 0x1000000')
    a('buffer_store_dword v100, v1, s[12:15], s3 offen')
    a.label('L_end_%s' % name); a('s_endpgm')
seq = [('sc1','sc1','sc1','xcd'), ('sc1','sc1','sc1','spread'), ('sc0 sc1','sc1','sc0 sc1','xcd'), ('sc0 sc1','sc1','sc0 sc1','spread'),
       ('','','sc1','xcd'), ('','','sc1','spread'), ('','','atom','xcd'), ('sc1','sc1','atomsc1','xcd'), ('sc1','sc1','atomsc1','spread'),
       ('sc1','sc1','sc1','xcd',1), ('','','sc0','xcd'), ('nt sc1','sc1','sc1','spread')]
a = Asm()
a.raw('.amdgcn_target "amdgcn-amd-amdhsa--gfx950"'); a.raw('.text')
hdr = '; @launch kernel=z_kernel grid=(256,1,1) block=(256,1,1) lds=0\n'; d = desc('z_kernel')
zero(a, 'z_kernel')
for i, args in enumerate(seq):
    name = 'k%d_kernel' % i
    bar(a, name, i, *args)
    hdr += '; @launch kernel=%s grid=(256,1,1) block=(256,1,1) lds=163840\n' % (name)
    d += desc(name)
open('mb8.s', 'w').write(hdr + a.text() + '.section .rodata,"a"\n' + d)
open('mb8_names.txt', 'w').write('\n'.join(str(s) for s in seq))
```

```python
import sys
sys.path.insert(0,'work')
from asmlib import *
from mb4 import prologue
from mb8 import desc
def st(a, k):
    a('s_memtime s[30:31]'); a('s_waitcnt lgkmcnt(0)'); a('v_writelane_b32 v100, s30, %d' % k)
def k(a, name):
    prologue(a, name)
    a('v_mov_b32 v100, 0')
    a('v_lshlrev_b32 v1, 4, v0'); a('s_lshl_b32 s3, s2, 16'); a('s_add_u32 s20, s3, 0x2000000'); a('s_add_u32 s21, s3, 0x4000000')
    for r in range(4): a('v_mov_b32 v%d, 5' % (4+r))
    a('buffer_load_dwordx4 v[10:13], v1, s[8:11], s3 offen'); a('s_waitcnt vmcnt(0)')
    a('buffer_load_dwordx4 v[10:13], v1, s[8:11], s3 offen'); a('s_waitcnt vmcnt(0)')
    st(a, 0)
    a('buffer_load_dwordx4 v[10:13], v1, s[8:11], s3 offen'); a('s_waitcnt vmcnt(0)')
    st(a, 1)
    a('buffer_store_dwordx4 v[4:7], v1, s[8:11], s20 offen sc1'); a('s_waitcnt vmcnt(0)')
    st(a, 2)
    a('s_add_u32 s20, s20, 4096')
    a('buffer_store_dwordx4 v[4:7], v1, s[8:11], s20 offen sc1'); a('s_waitcnt vmcnt(0)')
    st(a, 3)
    a('s_add_u32 s20, s20, 4096')
    a('buffer_store_dwordx4 v[4:7], v1, s[8:11], s20 offen sc1')
    a('buffer_load_dwordx4 v[10:13], v1, s[8:11], s3 offen'); a('s_waitcnt vmcnt(1)')
    st(a, 4)
    a('s_waitcnt vmcnt(0)')
    st(a, 5)
    a('s_add_u32 s20, s20, 4096')
    a('buffer_load_dwordx4 v[10:13], v1, s[8:11], s21 offen')
    a('buffer_store_dwordx4 v[4:7], v1, s[8:11], s20 offen'); a('s_waitcnt vmcnt(1)')
    st(a, 6)
    a('s_waitcnt vmcnt(0)')
    st(a, 7)
    a('s_add_u32 s21, s21, 4096')
    a('buffer_load_dwordx4 v[10:13], v1, s[8:11], s21 offen'); a('s_waitcnt vmcnt(0)')
    st(a, 8)
    a('s_add_u32 s20, s20, 4096')
    a('buffer_store_dwordx4 v[4:7], v1, s[8:11], s20 offen'); a('s_waitcnt vmcnt(0)')
    st(a, 9)
    a('s_add_u32 s20, s20, 4096'); a('s_mov_b32 m0, 0')
    a('buffer_store_dwordx4 v[4:7], v1, s[8:11], s20 offen sc1')
    a('buffer_load_dwordx4 v1, s[8:11], s3 offen lds'); a('s_waitcnt vmcnt(1)')
    st(a, 10)
    a('s_waitcnt vmcnt(0)')
    st(a, 11)
    a('v_lshlrev_b32 v1, 2, v0')
    a('s_lshl_b32 s3, s2, 8')
    a('buffer_store_dword v100, v1, s[12:15], s3 offen')
    a.label('L_end_%s' % name); a('s_endpgm')
a = Asm()
a.raw('.amdgcn_target "amdgcn-amd-amdhsa--gfx950"'); a.raw('.text')
hdr = '; @launch kernel=k_kernel grid=(256,1,1) block=(64,1,1) lds=65536\n'; d = desc('k_kernel')
k(a, 'k_kernel')
open('mb9.s', 'w').write(hdr + a.text() + '.section .rodata,"a"\n' + d)
```
